```python
import torch

def _softmax(x, axis=-1):
    return torch.softmax(x, dim=axis)
def _gelu(x):
    return torch.nn.functional.gelu(x, approximate="tanh")
def _silu(x):
    return torch.nn.functional.silu(x)
def _sigmoid(x):
    return torch.sigmoid(x)
def _layernorm(x, axis=-1, eps=1e-5):
    m = x.mean(dim=axis, keepdim=True)
    v = x.var(dim=axis, keepdim=True, unbiased=False)
    return (x - m) / torch.sqrt(v + eps)
def _scatter_add(tgt, idx, src, axis=0):
    return tgt.clone().index_add_(axis, idx, src)
def _segment_sum(src, seg, n):
    out = torch.zeros((n,) + src.shape[1:], dtype=src.dtype)
    return out.index_add_(0, seg, src)
def _pad(x, pw):
    flat = tuple(v for pair in reversed(pw) for v in pair)
    return torch.nn.functional.pad(x, flat)

kernel_name = 'gated_mix__compressed_kv_cla__geglu_ffn__prompt'

def setup_inputs():

    _w = (lambda a: (lambda t: t.to(torch.bfloat16) if t.is_floating_point() else t)(torch.as_tensor(a)))
    def _A_setup():
        B, H, Sq, Sk, D, M = 1, 32, 2048, 2048, 128, 640
        Dc = 4 * D
        return {
            "x": _w((lambda *s: torch.randn(*s, dtype=torch.bfloat16) * 0.05)(B, Sq, M)),
            "c_kv": _w((lambda *s: torch.randn(*s, dtype=torch.bfloat16) * 0.4)(B, Sk, Dc)),
            "w_q": _w((lambda *s: torch.randn(*s, dtype=torch.bfloat16) * 6.4)(M, H, D) * (M ** -0.5)),
            "w_uk": _w((lambda *s: torch.randn(*s, dtype=torch.bfloat16) * 6.4)(Dc, H, D) * (Dc ** -0.5)),
            "w_uv": _w((lambda *s: torch.randn(*s, dtype=torch.bfloat16) * 0.4)(Dc, H, D) * (Dc ** -0.5)),
            "w_o": _w((lambda *s: torch.randn(*s, dtype=torch.bfloat16) * 0.4)(H, D, M) * ((H * D) ** -0.5)),
        }
    _A_in = _A_setup()

    def _B_setup():
        B, S, D, F = 1, 2048, 640, 1728
        return {
            "x": _w((lambda *s: torch.randn(*s, dtype=torch.bfloat16) * 0.05)(B, S, D)),
            "w_gate": _w((lambda *s: torch.randn(*s, dtype=torch.bfloat16) * 0.05)(D, F)),
            "w_up": _w((lambda *s: torch.randn(*s, dtype=torch.bfloat16) * 0.05)(D, F)),
            "w_down": _w((lambda *s: torch.randn(*s, dtype=torch.bfloat16) * 0.05)(F, D)),
        }
    _B_in = _B_setup()

    return {
        "A_x": _A_in["x"],
        "A_c_kv": _A_in["c_kv"],
        "A_w_q": _A_in["w_q"],
        "A_w_uk": _A_in["w_uk"],
        "A_w_uv": _A_in["w_uv"],
        "A_w_o": _A_in["w_o"],
        "B_x": _B_in["x"],
        "B_w_gate": _B_in["w_gate"],
        "B_w_up": _B_in["w_up"],
        "B_w_down": _B_in["w_down"],
        "gate_w": _w((lambda *s: torch.randn(*s, dtype=torch.bfloat16) * 0.05)(640) * 16.0),
    }

def reference(A_x, A_c_kv, A_w_q, A_w_uk, A_w_uv, A_w_o, B_x, B_w_gate, B_w_up, B_w_down, gate_w):
    def _A_ref(x, c_kv, w_q, w_uk, w_uv, w_o):
        B, Sq, M = x.shape[0], x.shape[1], x.shape[2]
        Sk = c_kv.shape[1]
        H, D = w_q.shape[1], w_q.shape[2]
        q = torch.einsum("bqm,mhd->bhqd", x, w_q)
        k = torch.einsum("bkc,chd->bhkd", c_kv, w_uk)
        v = torch.einsum("bkc,chd->bhkd", c_kv, w_uv)
        scores = torch.einsum("bhqd,bhkd->bhqk", q, k) * (D ** -0.5)
        off = Sk - Sq
        qi = torch.arange(Sq)[:, None]
        kj = torch.arange(Sk)[None, :]
        cmask = kj <= (qi + off)
        scores = torch.where(cmask[None, None], scores, -1e9)
        p = _softmax(scores, axis=-1)
        ctx = torch.einsum("bhqk,bhkd->bhqd", p, v)
        return torch.einsum("bhqd,hdm->bqm", ctx, w_o)

    def _B_ref(x, w_gate, w_up, w_down):
        return (_gelu(x @ w_gate) * (x @ w_up)) @ w_down

    x = A_x
    g = _sigmoid((x * gate_w).sum(-1, keepdims=True))
    a = _A_ref(x, A_c_kv, A_w_q, A_w_uk, A_w_uv, A_w_o)
    b = _B_ref(x, B_w_gate, B_w_up, B_w_down)
    return g * a + (1 - g) * b
```

```python
import re

TRANS = ("v_exp_f32", "v_log_f32", "v_rcp_f32", "v_rsq_f32", "v_sqrt_f32", "v_sin_f32", "v_cos_f32")

def regs_of(tok):
    tok = tok.strip()
    tok = tok.lstrip("-")
    m = re.fullmatch(r"abs\((.*)\)", tok) or re.fullmatch(r"\|(.*)\|", tok)
    if m: tok = m.group(1)
    m = re.fullmatch(r"([vsa])\[(\d+):(\d+)\]", tok)
    if m:
        return [f"{m.group(1)}{i}" for i in range(int(m.group(2)), int(m.group(3)) + 1)]
    if re.fullmatch(r"[vsa]\d+", tok):
        return [tok]
    if tok in ("vcc", "vcc_lo", "vcc_hi"): return ["vcc"]
    if tok in ("exec", "exec_lo", "exec_hi"): return ["exec"]
    if tok == "m0": return ["m0"]
    return []

class I:
    __slots__ = ("t", "op", "rd", "wr", "kind", "C", "label")
    def __init__(self, t):
        self.t = t
        s = t.split(";")[0].strip()
        self.label = s.endswith(":")
        self.rd, self.wr, self.kind, self.C = [], [], "other", []
        if self.label or s.startswith(".") or not s:
            self.op = ""; self.kind = "meta"; return
        parts = s.split(None, 1)
        op = self.op = parts[0]
        rest = parts[1] if len(parts) > 1 else ""
        ops = [o.strip() for o in rest.split(",")]
        toks = []
        for o in ops:
            toks.append(o.split()[0] if o else "")
        R = lambda i: regs_of(toks[i]) if i < len(toks) else []
        if op.startswith("v_mfma"):
            self.kind = "mfma"; self.wr = R(0); self.rd = R(1) + R(2); self.C = R(3)
        elif op.startswith("ds_read") or op.startswith("ds_bpermute") or op.startswith("ds_swizzle"):
            self.kind = "dsr"; self.wr = R(0); self.rd = sum((R(i) for i in range(1, len(toks))), [])
        elif op.startswith("ds_write"):
            self.kind = "dsw"; self.rd = sum((R(i) for i in range(len(toks))), [])
        elif op.startswith("buffer_load") or op.startswith("global_load"):
            if " lds" in s or "_lds_" in op:
                self.kind = "dma"; self.rd = sum((R(i) for i in range(len(toks))), []) + ["m0"]
            else:
                self.kind = "vld"; self.wr = R(0); self.rd = sum((R(i) for i in range(1, len(toks))), [])
        elif op.startswith("buffer_store") or op.startswith("global_store"):
            self.kind = "vst"; self.rd = sum((R(i) for i in range(len(toks))), [])
        elif op.startswith("buffer_atomic") or op.startswith("global_atomic"):
            self.kind = "vat"; self.rd = sum((R(i) for i in range(len(toks))), [])
            if "sc0" in s: self.wr = R(0)
        elif op.startswith("buffer_") :
            self.kind = "cache"
        elif op.startswith("v_"):
            self.kind = "trans" if op.replace("_e32", "").replace("_e64", "") in TRANS else "valu"
            if op.startswith("v_cmp"):
                self.wr = R(0); self.rd = R(1) + R(2)
                if op.startswith("v_cmpx"): self.wr += ["exec"]
            elif op.startswith("v_permlane") and "swap" in op:
                self.wr = R(0) + R(1); self.rd = R(0) + R(1); self.kind = "perm"
            elif op.startswith("v_readfirstlane") or op.startswith("v_readlane"):
                self.wr = R(0); self.rd = sum((R(i) for i in range(1, len(toks))), []); self.kind = "rdlane"
            elif op.startswith(("v_add_co", "v_sub_co", "v_addc_co", "v_subb_co")):
                self.wr = R(0) + R(1); self.rd = sum((R(i) for i in range(2, len(toks))), [])
            else:
                self.wr = R(0); self.rd = sum((R(i) for i in range(1, len(toks))), [])
                if op.startswith(("v_fmac", "v_mac", "v_dot2c", "v_pk_fmac")): self.rd += R(0)
                if op.startswith("v_cndmask") and len(toks) == 3: self.rd += ["vcc"]
                if "dpp" in op or "row_" in s or "quad_perm" in s:
                    self.kind = "dpp"; self.rd += R(0)
        elif op.startswith("s_waitcnt"):
            self.kind = "wait"
        elif op == "s_nop":
            self.kind = "nop"
        elif op == "s_barrier":
            self.kind = "bar"
        elif op.startswith("s_load") or op.startswith("s_memtime") or op.startswith("s_memrealtime") or op.startswith("s_atomic"):
            self.kind = "smem"; self.wr = R(0); self.rd = sum((R(i) for i in range(1, len(toks))), [])
        elif op.startswith("s_cbranch") or op in ("s_branch", "s_endpgm", "s_call_b64", "s_setpc_b64"):
            self.kind = "br"
            if "vcc" in op: self.rd = ["vcc"]
        elif op.startswith("s_cmp") or op.startswith("s_bitcmp"):
            self.kind = "salu"; self.rd = R(0) + R(1)
        elif op.startswith("s_"):
            self.kind = "salu"; self.wr = R(0); self.rd = sum((R(i) for i in range(1, len(toks))), [])
            if "saveexec" in op: self.wr += ["exec"]
    def __repr__(self): return self.t

def L(text):
    out = []
    for l in text.strip("\n").split("\n"):
        l = l.strip()
        if l: out.append(I(l))
    return out

def states(i):
    if i.kind == "meta": return 0
    if i.kind == "nop": return int(i.t.split()[1], 0) + 1
    return 1

ISVALU = ("valu", "trans", "perm", "rdlane", "dpp")

def mf_pass(i):
    return 8 if "32x32" in i.op else 4

def check_hazards(seq, name=""):
    errs = []
    n = len(seq)
    for a in range(n):
        p = seq[a]
        if p.kind in ("meta", "nop", "wait", "bar", "br"): continue
        dist = 0
        for b in range(a + 1, n):
            c = seq[b]
            if c.kind != "meta" and c.kind != "nop":
                need = 0; why = ""
                pw = set(p.wr); cr = set(c.rd); cw = set(c.wr); cc = set(c.C)
                vw = {r for r in pw if r[0] in "va" and r != "vcc"}
                sw = {r for r in pw if r[0] == "s" or r == "vcc"}
                if p.kind in ISVALU:
                    if c.kind == "mfma" and vw & (cr | cc): need, why = 2, "valu->mfma"
                    if c.kind == "perm" and vw & cr: need, why = 2, "valu->permlane"
                    if c.kind == "dpp" and vw & cr: need, why = 2, "valu->dpp"
                    if c.kind == "rdlane" and vw & cr and need < 1: need, why = 1, "valu->readlane"
                    if p.kind == "trans" and c.kind in ISVALU and c.kind != "trans" and vw & cr and need < 1: need, why = 1, "trans->valu"
                    if sw and c.kind in ISVALU and sw & cr: need, why = max(need, 2), "valu sgpr->valu"
                    if sw and c.kind == "rdlane" and sw & cr: need, why = max(need, 4), "valu sgpr->lane sel"
                    if sw and c.kind in ("vld", "vst", "dma", "vat") and sw & cr: need, why = 5, "valu sgpr->vmem"
                    if "exec" in pw and c.kind == "mfma": need, why = 4, "exec->mfma"
                    if "exec" in pw and c.kind in ("perm", "rdlane"): need, why = 4, "exec->perm"
                    if "exec" in pw and c.kind == "dpp": need, why = 5, "exec->dpp"
                if p.kind == "mfma":
                    ps = mf_pass(p)
                    big = {4: 8, 8: 12}[ps]; ov = {4: 6, 8: 10}[ps]; war = {4: 3, 8: 7}[ps]
                    if c.kind == "mfma":
                        if pw & cr: need, why = big, "mfma D->A/B"
                        elif pw & cc and not (p.wr == c.C and mf_pass(c) == ps): need, why = ov, "mfma D->C overlap"
                        elif pw & cw and not (p.wr == c.C): need, why = big, "mfma D->D WAW (conservative)"
                    elif c.kind in ISVALU:
                        if pw & (cr | cw): need, why = big, "mfma D->valu"
                        elif set(p.C) & cw: need, why = war, "mfma C WAR valu"
                    elif c.kind in ("vst", "dsw", "vld", "dsr", "dma", "vat"):
                        if pw & (cr | cw): need, why = big, "mfma D->mem"
                if p.kind == "salu" and "m0" in pw and c.kind == "dma": need, why = 1, "m0->dma"
                if p.kind == "vst" and ("x4" in p.op or "x3" in p.op) and c.kind in ISVALU:
                    data = set(regs_of(p.t.split(None, 1)[1].split(",")[0 if p.op.startswith("buffer") else 1].strip()))
                    if data & cw: need, why = 2, "store data WAR"
                if dist < need:
                    errs.append(f"{name}: {why} need {need} have {dist}: [{a}] {p.t}  ->  [{b}] {c.t}")
            dist += states(c)
            if dist >= 20: break
    return errs

def add_lgkm(seq, q=None, slack=0):
    q = list(q or [])
    out = []
    for idx, i in enumerate(seq):
        if i.kind == "wait":
            m = re.search(r"lgkmcnt\((\d+)\)", i.t)
            if m:
                n = int(m.group(1))
                while len(q) > n: q.pop(0)
            out.append(i); continue
        touch = set(i.rd) | set(i.C) | (set() if i.kind == "dsr" else set(i.wr))
        last = -1
        for j, (d, _) in enumerate(q):
            if d & touch: last = j
        if last >= 0:
            s = slack
            while s > 0 and last + 1 < len(q) and len(out) - q[last + 1][1] >= 6:
                last += 1; s -= 1
            n = len(q) - 1 - last
            n = min(n, 15)
            out.append(I(f"s_waitcnt lgkmcnt({n})"))
            q = q[len(q) - n:] if n else []
        if i.kind == "dsr":
            q.append((set(i.wr), len(out)))
        elif i.kind == "dsw":
            q.append((set(), len(out)))
        elif i.kind == "smem" and "s[100:101]" not in i.t:
            raise Exception("smem inside add_lgkm region: " + i.t)
        out.append(i)
    q = [(d, p - len(out)) for d, p in q]
    return out, q

def qsig(q):
    return [tuple(sorted(d)) for d, _ in q]

def check_waits(seq, name=""):
    errs = []
    lq, vq = [], []
    for k, i in enumerate(seq):
        if i.kind == "wait":
            m = re.search(r"lgkmcnt\((\d+)\)", i.t)
            if m:
                n = int(m.group(1))
                while len(lq) > n: lq.pop(0)
            m = re.search(r"vmcnt\((\d+)\)", i.t)
            if m:
                n = int(m.group(1))
                while len(vq) > n: vq.pop(0)
            continue
        for d in lq:
            if d & (set(i.rd) | set(i.C) | (set() if i.kind == "dsr" else set(i.wr))):
                errs.append(f"{name}: unwaited lds use [{k}] {i.t}")
        for d in vq:
            if d & (set(i.rd) | set(i.C) | (set() if i.kind == "vld" else set(i.wr))):
                errs.append(f"{name}: unwaited vmem use [{k}] {i.t}")
        if i.kind in ("dsr", "smem"): lq.append(set(i.wr))
        elif i.kind == "dsw": lq.append(set())
        elif i.kind in ("vld", "vat"): vq.append(set(i.wr))
        elif i.kind in ("vst", "dma") and "@opt" not in i.t: vq.append(set())
    return errs

def weave(main, fills):
    by = {}
    for pos, x in fills:
        by.setdefault(pos, []).extend(x if isinstance(x, list) else [x])
    out = list(by.get(-1, []))
    for k, m in enumerate(main):
        out.append(m)
        out.extend(by.get(k, []))
    for pos in sorted(by):
        if pos >= len(main): out.extend(by[pos])
    return out

def spread(items, lo, hi):
    n = len(items)
    return [(lo + (k * (hi - lo)) // n, it) for k, it in enumerate(items)]

def text(seq):
    return "\n".join((i.t if (i.label or i.t.startswith(".")) else "    " + i.t) for i in seq) + "\n"

def kernel(name, seq, vgpr=256, accum=256, sgpr=102):
    return f""".text
.globl {name}
.p2align 8
.type {name},@function
{name}:
{text(seq)}    s_endpgm
.section .rodata,"a"
.p2align 6
.amdhsa_kernel {name}
  .amdhsa_next_free_vgpr {vgpr}
  .amdhsa_next_free_sgpr {sgpr}
  .amdhsa_accum_offset {accum}
  .amdhsa_group_segment_fixed_size 0
  .amdhsa_kernarg_size 112
  .amdhsa_user_sgpr_count 2
  .amdhsa_user_sgpr_kernarg_segment_ptr 1
  .amdhsa_system_sgpr_workgroup_id_x 1
.end_amdhsa_kernel
"""
```

```python
from ag import *

KF_OFF = 0
VF_OFF = 16 << 20
AF_OFF = 32 << 20
G_OFF = 56 << 20
PART_OFF = 64 << 20
WS_BYTES = 0x10000000
NSTG = 91
AF_MT = NSTG * 16384

A_X, A_C, A_WQ, A_WUK, A_WUV, A_WO, A_BX, A_WG, A_WU, A_WD, A_GW, A_OUT, A_DBG, A_WS = [8 * i for i in range(14)]
SZ_X, SZ_C, SZ_WQ, SZ_WUK, SZ_WO, SZ_WG, SZ_WD, SZ_GW, SZ_OUT = 2621440, 2097152, 5242880, 4194304, 5242880, 2211840, 2211840, 1280, 2621440

def srd(d, p, size):
    return L(f"""
    s_mov_b32 s{d}, s{p}
    s_and_b32 s{d+1}, s{p+1}, 0xffff
    s_mov_b32 s{d+2}, {size:#x}
    s_mov_b32 s{d+3}, 0x20000
    """)

def mf(d, a, b, c=None):
    cs = "0" if c == 0 else (f"v[{d}:{d+3}]" if c is None else f"v[{c}:{c+3}]")
    return I(f"v_mfma_f32_16x16x32_bf16 v[{d}:{d+3}], v[{a}:{a+3}], v[{b}:{b+3}], {cs}")

def rd128(d, a, off):
    assert 0 <= off < 65536, off
    return I(f"ds_read_b128 v[{d}:{d+3}], v{a} offset:{off}")

def rdtr(d, a, off):
    assert 0 <= off < 65536, off
    return I(f"ds_read_b64_tr_b16 v[{d}:{d+1}], v{a} offset:{off}")

def dma(v, s, soff, off, tag=None):
    i = I(f"buffer_load_dwordx4 v{v}, s[{s}:{s+3}], s{soff} offen offset:{off} lds" + (f" ; @{tag}" if tag else ""))
    return i

def waitvm(tag, lgkm=False):
    return I(f"s_waitcnt vmcnt(@{tag})" + (" lgkmcnt(0)" if lgkm else ""))

import re as _re
def resolve_vm(seq):
    out = []
    vm = []
    for i in seq:
        if i.kind == "wait" and "@" in i.t.split(";")[0]:
            tag = _re.search(r"vmcnt\(@(\w+)\)", i.t).group(1)
            idx = [k for k, t in enumerate(vm) if t == tag]
            assert idx, f"no vmem op tagged {tag}"
            n = len(vm) - 1 - idx[-1]
            assert n <= 63, (tag, n)
            i = I(i.t.replace(f"@{tag}", str(n)))
        elif i.kind in ("dma", "vld", "vst", "vat"):
            m = _re.search(r";\s*@(\w+)", i.t)
            vm.append(m.group(1) if m else None)
        out.append(i)
    return out

def cvtpk(d, a, b):
    return I(f"v_cvt_pk_bf16_f32 v{d}, v{a}, v{b}")

def pack2(dst, x, y):
    return [cvtpk(dst, x, x + 1), cvtpk(dst + 1, x + 2, x + 3), cvtpk(dst + 2, y, y + 1), cvtpk(dst + 3, y + 2, y + 3)]

def verify(path, name):
    errs = check_hazards(path, name) + check_waits(path, name)
    for e in errs[:40]: print(e)
    assert not errs, f"{len(errs)} problems in {name}"
```

```python
from common import *

sW, sXCD, sSLOT, sH, sMB = 3, 4, 5, 6, 7
SX, SC, SW1, SW2, SWS, SGW = 8, 12, 16, 20, 24, 28
soC, soW, soX, soG = 32, 33, 34, 35
mA, mWkv, mWgu = 36, 37, 38
sFB, sST, sT0, sT1, sVALID = 39, 40, 41, 42, 43
P = 44
vLane, vI16, vG = 1, 2, 3
vDC = [4, 5, 6, 7]
vDW = [8, 9, 10, 11]
vRA = [[12, 13], [14, 15]]
vRW = [[16, 17, 18, 19], [20, 21, 22, 23]]
vDX = [24, 25, 26, 27]
vDG = [28, 29]
vST = 30
vT = 31
SET = [32, 80]
ACC = 128

def setup():
    s = L(f"""
    s_cmp_ge_u32 s2, 256
    s_cbranch_scc1 P1_END
    s_load_dwordx4 s[{P}:{P+3}], s[0:1], {A_X}
    s_load_dwordx4 s[{P+4}:{P+7}], s[0:1], {A_WUK}
    s_load_dwordx4 s[{P+8}:{P+11}], s[0:1], {A_WG}
    s_load_dwordx2 s[{P+12}:{P+13}], s[0:1], {A_GW}
    s_load_dwordx2 s[{P+14}:{P+15}], s[0:1], {A_WS}
    v_lshrrev_b32 v{vT}, 6, v0
    v_and_b32 v{vLane}, 63, v0
    v_readfirstlane_b32 s{sW}, v{vT}
    v_and_b32 v{vI16}, 15, v0
    v_lshrrev_b32 v{vG}, 4, v{vLane}
    s_and_b32 s{sXCD}, s2, 7
    s_lshr_b32 s{sSLOT}, s2, 3
    s_and_b32 s{sT0}, s{sSLOT}, 3
    s_lshl_b32 s{sH}, s{sXCD}, 2
    s_add_u32 s{sH}, s{sH}, s{sT0}
    s_lshr_b32 s{sMB}, s{sSLOT}, 2
    s_lshl_b32 s{sFB}, s{sT0}, 3
    s_add_u32 s{sFB}, s{sFB}, s{sXCD}
    s_cmp_lt_u32 s{sFB}, 27
    s_cselect_b32 s{sVALID}, 1, 0
    s_cselect_b32 s{sFB}, s{sFB}, 0
    s_lshl_b32 s{mA}, s{sW}, 12
    s_add_u32 s{mWkv}, s{mA}, 32768
    s_lshl_b32 s{mWgu}, s{sW}, 11
    s_add_u32 s{mWgu}, s{mWgu}, 32768
    """)
    t0, t1, t2, t3 = 32, 33, 34, 35
    s += L(f"""
    v_lshrrev_b32 v{t0}, 3, v{vLane}
    v_and_b32 v{t1}, 7, v{vLane}
    """)
    for n in range(4):
        s += L(f"""
        v_add_u32 v{t2}, {4*n}, v{vG}
        v_and_b32 v{t2}, 7, v{t2}
        v_xor_b32 v{t2}, v{t2}, v{t1}
        v_lshlrev_b32 v{t2}, 4, v{t2}
        v_add_u32 v{t3}, {8*n}, v{t0}
        v_lshl_add_u32 v{vDC[n]}, v{t3}, 10, v{t2}
        v_subrev_u32 v{vDC[n]}, {n*1024}, v{vDC[n]}
        v_mul_u32_u24 v{t3}, 1280, v{t3}
        v_add_u32 v{vDX[n]}, v{t3}, v{t2}
        v_subrev_u32 v{vDX[n]}, {n*1024}, v{vDX[n]}
        """)
    for n in range(4):
        s += L(f"""
        v_lshrrev_b32 v{t2}, 1, v{vI16}
        v_xor_b32 v{t2}, v{t2}, v{vG}
        v_xor_b32 v{t2}, {((n>>1)&1)<<2}, v{t2}
        v_lshlrev_b32 v{t2}, 5, v{t2}
        v_and_b32 v{t3}, 1, v{vLane}
        v_lshl_add_u32 v{t2}, v{t3}, 4, v{t2}
        v_add_u32 v{t3}, {4*n}, v{vG}
        v_lshl_add_u32 v{vDW[n]}, v{t3}, 13, v{t2}
        v_subrev_u32 v{vDW[n]}, {n*1024}, v{vDW[n]}
        """)
    for n in range(2):
        s += L(f"""
        v_lshrrev_b32 v{t2}, 1, v{t1}
        v_and_b32 v{t3}, 1, v{vG}
        v_xor_b32 v{t2}, v{t2}, v{t3}
        v_xor_b32 v{t2}, {n<<1}, v{t2}
        v_lshlrev_b32 v{t2}, 5, v{t2}
        v_and_b32 v{t3}, 1, v{vLane}
        v_lshl_add_u32 v{t2}, v{t3}, 4, v{t2}
        v_add_u32 v{t3}, {8*n}, v{t0}
        v_mul_u32_u24 v{t3}, 3456, v{t3}
        v_add_u32 v{vDG[n]}, v{t3}, v{t2}
        v_subrev_u32 v{vDG[n]}, {n*1024}, v{vDG[n]}
        """)
    s += L(f"""
    s_lshl_b32 s{sT0}, s{sMB}, 8
    s_lshl_b32 s{sT1}, s{sW}, 5
    s_add_u32 s{sT0}, s{sT0}, s{sT1}
    s_lshl_b32 s{soC}, s{sT0}, 10
    s_mul_i32 s{soX}, s{sT0}, 1280
    s_and_b32 s{sT0}, s{sW}, 3
    s_lshl_b32 s{soW}, s{sT0}, 17
    s_lshl_b32 s{sT1}, s{sH}, 8
    s_add_u32 s{soW}, s{soW}, s{sT1}
    s_mul_i32 s{soG}, s{sT0}, {16*3456}
    s_lshl_b32 s{sT1}, s{sFB}, 7
    s_add_u32 s{soG}, s{soG}, s{sT1}
    s_waitcnt lgkmcnt(0)
    """)
    s += srd(SX, P, SZ_X) + srd(SC, P + 2, SZ_C) + srd(SWS, P + 14, WS_BYTES) + srd(SGW, P + 12, SZ_GW)
    s += L(f"""
    s_cmp_lt_u32 s{sW}, 4
    s_cselect_b32 s{P+4}, s{P+4}, s{P+6}
    s_cselect_b32 s{P+5}, s{P+5}, s{P+7}
    s_cselect_b32 s{P+8}, s{P+8}, s{P+10}
    s_cselect_b32 s{P+9}, s{P+9}, s{P+11}
    """)
    s += srd(SW1, P + 4, SZ_WUK) + srd(SW2, P + 8, SZ_WG)
    return s

def kv_dma(stage):
    buf = (stage % 2) * 65536
    tag = f"kv{stage}"
    a = [I(f"s_add_u32 m0, s{mA}, {buf}")] + [I("s_nop 0")]
    g1 = [[I(f"s_add_u32 m0, s{mA}, {buf}"), I(f"s_nop 0"), dma(vDC[0], SC, soC, 0, tag)]] + [[dma(vDC[n], SC, soC, n * 1024, tag)] for n in range(1, 4)]
    g1[-1].append(I(f"s_add_u32 s{soC}, s{soC}, 128"))
    g2 = [[I(f"s_add_u32 m0, s{mWkv}, {buf}"), I(f"s_nop 0"), dma(vDW[0], SW1, soW, 0, tag)]] + [[dma(vDW[n], SW1, soW, n * 1024, tag)] for n in range(1, 4)]
    g2[-1].append(I(f"s_add_u32 s{soW}, s{soW}, {64*8192}"))
    return g1 + g2

GSLOT = [0, 65536, 114688]
def gu_dma(stage):
    buf = GSLOT[stage % 3]
    tag = f"gu{stage}"
    g1 = [[I(f"s_add_u32 m0, s{mA}, {buf}"), I(f"s_nop 0"), dma(vDX[0], SX, soX, 0, tag)]] + [[dma(vDX[n], SX, soX, n * 1024, tag)] for n in range(1, 4)]
    g1[-1].append(I(f"s_add_u32 s{soX}, s{soX}, 128"))
    g2 = [[I(f"s_add_u32 m0, s{mWgu}, {buf}"), I(f"s_nop 0"), dma(vDG[0], SW2, soG, 0, tag)], [dma(vDG[1], SW2, soG, 1024, tag), I(f"s_add_u32 s{soG}, s{soG}, {64*3456}")]]
    return g1 + g2

def kv_addr():
    t0, t1, t2 = 32, 33, 34
    s = L(f"""
    s_lshr_b32 s{sT0}, s{sW}, 1
    s_and_b32 s{sT0}, s{sT0}, 1
    s_lshl_b32 s{sT0}, s{sT0}, 14
    v_lshrrev_b32 v{t0}, 1, v{vI16}
    v_xor_b32 v{t0}, v{t0}, v{vG}
    v_lshlrev_b32 v{t0}, 4, v{t0}
    v_lshl_add_u32 v{t0}, v{vI16}, 7, v{t0}
    v_add_u32 v{vRA[0][0]}, s{sT0}, v{t0}
    v_xor_b32 v{vRA[0][1]}, 64, v{vRA[0][0]}
    v_add_u32 v{vRA[1][0]}, 0x10000, v{vRA[0][0]}
    v_add_u32 v{vRA[1][1]}, 0x10000, v{vRA[0][1]}
    s_lshr_b32 s{sT0}, s{sW}, 2
    s_lshl_b32 s{sT0}, s{sT0}, 14
    s_add_u32 s{sT0}, s{sT0}, 32768
    s_and_b32 s{sT1}, s{sW}, 1
    s_lshl_b32 s{sT1}, s{sT1}, 2
    v_lshrrev_b32 v{t0}, 2, v{vI16}
    v_and_b32 v{t1}, 1, v{vG}
    v_lshl_add_u32 v{t1}, v{t1}, 2, v{t0}
    v_xor_b32 v{t1}, s{sT1}, v{t1}
    v_lshl_add_u32 v{t0}, v{vG}, 3, v{t0}
    v_lshlrev_b32 v{t0}, 8, v{t0}
    v_and_b32 v{t2}, 3, v{vI16}
    v_lshl_add_u32 v{t0}, v{t2}, 3, v{t0}
    v_add_u32 v{t0}, s{sT0}, v{t0}
    """)
    for j in range(4):
        s += L(f"""
        v_xor_b32 v{t2}, {j}, v{t1}
        v_lshl_add_u32 v{vRW[0][j]}, v{t2}, 5, v{t0}
        v_add_u32 v{vRW[1][j]}, 0x10000, v{vRW[0][j]}
        """)
    return s

def kv_reads(stage, kk, st):
    b = stage % 2
    base = SET[st]
    c = lambda tt: rd128(base + 4 * tt, vRA[b][kk], tt * 2048)
    w = lambda j: [rdtr(base + 32 + 4 * j, vRW[b][j], kk * 8192), rdtr(base + 32 + 4 * j + 2, vRW[b][j], kk * 8192 + 1024)]
    return w(0) + [c(0)] + w(1) + w(2) + w(3) + [c(t) for t in range(1, 8)]

def kv_mfmas(kind, st, first):
    base = SET[st]
    out = []
    for tt in range(8):
        for j in range(4):
            d = ACC + (tt * 4 + j) * 4
            cf, wf = base + 4 * tt, base + 32 + 4 * j
            out.append(mf(d, wf, cf, 0 if first else None) if kind == 0 else mf(d, cf, wf, 0 if first else None))
    return out

GSET = [32, 64]
GACC = 128
vGX = [12, 13]
vGW = [16, 17]
def gu_addr():
    t0, t1, t2 = 64, 65, 66
    return L(f"""
    s_and_b32 s{sT0}, s{sW}, 3
    s_lshl_b32 s{sT0}, s{sT0}, 13
    v_lshrrev_b32 v{t0}, 1, v{vI16}
    v_xor_b32 v{t0}, v{t0}, v{vG}
    v_lshlrev_b32 v{t0}, 4, v{t0}
    v_lshl_add_u32 v{t0}, v{vI16}, 7, v{t0}
    v_add_u32 v{vGX[0]}, s{sT0}, v{t0}
    v_xor_b32 v{vGX[1]}, 64, v{vGX[0]}
    s_lshr_b32 s{sT1}, s{sW}, 2
    s_lshl_b32 s{sT1}, s{sT1}, 1
    v_lshrrev_b32 v{t0}, 2, v{vI16}
    v_lshrrev_b32 v{t1}, 1, v{t0}
    v_and_b32 v{t2}, 1, v{vG}
    v_lshl_add_u32 v{t1}, v{t2}, 1, v{t1}
    v_xor_b32 v{t1}, s{sT1}, v{t1}
    v_lshl_add_u32 v{t0}, v{vG}, 3, v{t0}
    v_lshlrev_b32 v{t0}, 7, v{t0}
    v_and_b32 v{t2}, 3, v{vI16}
    v_lshl_add_u32 v{t0}, v{t2}, 3, v{t0}
    v_add_u32 v{t0}, 32768, v{t0}
    v_lshl_add_u32 v{vGW[0]}, v{t1}, 5, v{t0}
    v_xor_b32 v{t1}, 1, v{t1}
    v_lshl_add_u32 v{vGW[1]}, v{t1}, 5, v{t0}
    """)

def gu_adv(frm, to):
    d = GSLOT[to % 3] - GSLOT[frm % 3]
    op = "v_add_u32" if d >= 0 else "v_subrev_u32"
    return [I(f"{op} v{r}, {abs(d):#x}, v{r}") for r in vGX + vGW]

def gu_reads(kk, st):
    base = GSET[st]
    x = lambda tt: rd128(base + 4 * tt, vGX[kk], tt * 2048)
    w = lambda m, j: [rdtr(base + 16 + 8 * m + 4 * j, vGW[j], m * 8192 + kk * 4096), rdtr(base + 16 + 8 * m + 4 * j + 2, vGW[j], m * 8192 + kk * 4096 + 512)]
    return w(0, 0) + [x(0)] + w(0, 1) + w(1, 0) + w(1, 1) + [x(t) for t in range(1, 4)]

def gu_mfmas(st, first):
    base = GSET[st]
    out = []
    for tt in range(4):
        for m in range(2):
            for j in range(2):
                d = GACC + ((tt * 2 + m) * 2 + j) * 4
                out.append(mf(d, base + 16 + 8 * m + 4 * j, base + 4 * tt, 0 if first else None))
    return out

def kv_epilogue(kind):
    s = []
    if kind == 0:
        s += L(f"""
        s_lshl_b32 s{sST}, s{sH}, 19
        s_lshl_b32 s{sT0}, s{sMB}, 16
        s_add_u32 s{sST}, s{sST}, s{sT0}
        s_lshr_b32 s{sT0}, s{sW}, 1
        s_and_b32 s{sT0}, s{sT0}, 1
        s_lshl_b32 s{sT0}, s{sT0}, 15
        s_add_u32 s{sST}, s{sST}, s{sT0}
        s_and_b32 s{sT0}, s{sW}, 1
        s_lshl_b32 s{sT0}, s{sT0}, 11
        s_add_u32 s{sST}, s{sST}, s{sT0}
        """)
    else:
        s += L(f"""
        s_lshl_b32 s{sST}, s{sH}, 19
        s_add_u32 s{sST}, s{sST}, {VF_OFF:#x}
        s_lshl_b32 s{sT0}, s{sMB}, 16
        s_add_u32 s{sST}, s{sST}, s{sT0}
        s_lshr_b32 s{sT0}, s{sW}, 1
        s_and_b32 s{sT0}, s{sT0}, 1
        s_lshl_b32 s{sT0}, s{sT0}, 15
        s_add_u32 s{sST}, s{sST}, s{sT0}
        s_and_b32 s{sT0}, s{sW}, 1
        s_lshl_b32 s{sT0}, s{sT0}, 12
        s_add_u32 s{sST}, s{sST}, s{sT0}
        """)
    s += L(f"v_lshlrev_b32 v{vST}, 4, v{vLane}")
    k = 0
    A = lambda tt, j: ACC + (tt * 4 + j) * 4
    if kind == 0:
        for tt in range(8):
            for jj in range(2):
                tmp = 96 + 4 * (k % 8); k += 1
                s += pack2(tmp, A(tt, 2 * jj), A(tt, 2 * jj + 1))
                s.append(I(f"buffer_store_dwordx4 v[{tmp}:{tmp+3}], v{vST}, s[{SWS}:{SWS+3}], s{sST} offen offset:{jj*1024}"))
            s.append(I(f"s_add_u32 s{sST}, s{sST}, 4096"))
    else:
        for uu in range(4):
            for j in range(4):
                tmp = 96 + 4 * (k % 8); k += 1
                s += pack2(tmp, A(2 * uu, j), A(2 * uu + 1, j))
                s.append(I(f"buffer_store_dwordx4 v[{tmp}:{tmp+3}], v{vST}, s[{SWS}:{SWS+3}], s{sST} offen offset:{j*1024}"))
            s.append(I(f"s_add_u32 s{sST}, s{sST}, 8192"))
    return s

def kv_part(kind):
    s = []
    for st in range(8):
        r = kv_reads(st, 1, 1)
        s += weave(kv_mfmas(kind, 0, st == 0), spread(r, 0, 24))
        s += [waitvm(f"kv{st+1}" if st < 7 else "gu0", lgkm=True), I("s_barrier")]
        if st < 7:
            r = kv_reads(st + 1, 0, 0)
            d = kv_dma(st + 2) if st < 6 else gu_dma(0)
            pre = []
        else:
            pre = gu_addr()
            r = gu_reads(0, 0)
            d = gu_dma(1) + gu_dma(2)
        s += pre + weave(kv_mfmas(kind, 1, False), spread(r, 0, 24) + spread(d, 1, 25))
    s += [I("s_nop 7")]
    s += kv_epilogue(kind)
    return s

C1 = 2.0 * 0.7978845608028654 * 1.4426950408889634
def f2h(x):
    import struct
    return "0x%08x" % struct.unpack("<I", struct.pack("<f", x))[0]

def gu_part():
    s = []
    for st in range(10):
        r = gu_reads(1, 1)
        s += weave(gu_mfmas(0, st == 0), spread(r, 0, 12))
        if st < 9:
            s += [waitvm(f"gu{st+1}", lgkm=True), I("s_barrier")]
            r = gu_adv(st, st + 1) + gu_reads(0, 0)
            d = gu_dma(st + 3) if st + 3 < 10 else []
            s += weave(gu_mfmas(1, False), spread(r, 0, 14) + (spread(d, 1, 13) if d else []))
        else:
            s += gu_mfmas(1, False)
    s += L(f"""
    s_and_b32 s{sT0}, s{sW}, 3
    s_lshr_b32 s{sT1}, s{sT0}, 1
    s_lshl_b32 s{sST}, s{sMB}, 1
    s_add_u32 s{sST}, s{sST}, s{sT1}
    s_mul_i32 s{sST}, s{sST}, {AF_MT}
    s_add_u32 s{sST}, s{sST}, {AF_OFF:#x}
    s_lshl_b32 s{sT1}, s{sFB}, 14
    s_add_u32 s{sST}, s{sST}, s{sT1}
    s_and_b32 s{sT0}, s{sT0}, 1
    s_lshl_b32 s{sT0}, s{sT0}, 13
    s_add_u32 s{sST}, s{sST}, s{sT0}
    s_lshr_b32 s{sT0}, s{sW}, 2
    s_lshl_b32 s{sT0}, s{sT0}, 10
    s_add_u32 s{sST}, s{sST}, s{sT0}
    s_mov_b32 s{sT0}, {f2h(-C1 * 0.044715)}
    v_mov_b32 v{vT}, {f2h(-C1)}
    """)
    G = lambda tt, m, j: GACC + ((tt * 2 + m) * 2 + j) * 4
    for tt in range(4):
        tb = 32 + (tt % 2) * 16
        regs = [(G(tt, 0, j) + r, G(tt, 1, j) + r) for j in range(2) for r in range(4)]
        T = [tb + k for k in range(8)]
        for k, (a, u) in enumerate(regs): s.append(I(f"v_mul_f32 v{T[k]}, v{a}, v{a}"))
        for k, (a, u) in enumerate(regs): s.append(I(f"v_fma_f32 v{T[k]}, v{T[k]}, s{sT0}, v{vT}"))
        for k, (a, u) in enumerate(regs): s.append(I(f"v_mul_f32 v{T[k]}, v{T[k]}, v{a}"))
        for k, (a, u) in enumerate(regs): s.append(I(f"v_exp_f32 v{T[k]}, v{T[k]}"))
        for k, (a, u) in enumerate(regs): s.append(I(f"v_add_f32 v{T[k]}, 1.0, v{T[k]}"))
        for k, (a, u) in enumerate(regs): s.append(I(f"v_rcp_f32 v{T[k]}, v{T[k]}"))
        for k, (a, u) in enumerate(regs): s.append(I(f"v_mul_f32 v{a}, v{a}, v{u}"))
        for k, (a, u) in enumerate(regs): s.append(I(f"v_mul_f32 v{T[k]}, v{T[k]}, v{a}"))
        o = tb + 8
        s += pack2(o, T[0], T[4])
        s.append(I(f"buffer_store_dwordx4 v[{o}:{o+3}], v{vST}, s[{SWS}:{SWS+3}], s{sST} offen offset:{(tt%2)*2048}"))
        if tt == 1: s.append(I(f"s_add_u32 s{sST}, s{sST}, 4096"))
    return s

def g_part():
    X, W, A, T = 32, 72, 112, 116
    s = L(f"""
    s_waitcnt lgkmcnt(0)
    s_sub_u32 s{sT0}, s{sXCD}, 3
    s_lshl_b32 s{sT0}, s{sT0}, 3
    s_add_u32 s{sT0}, s{sT0}, s{sMB}
    s_cmp_ge_u32 s{sT0}, 32
    s_cbranch_scc1 P1_END
    s_lshl_b32 s{sT0}, s{sT0}, 6
    s_lshl_b32 s{sT1}, s{sW}, 3
    s_add_u32 s{sT0}, s{sT0}, s{sT1}
    v_lshrrev_b32 v{T}, 3, v{vLane}
    v_add_u32 v{T}, s{sT0}, v{T}
    v_and_b32 v{T+1}, 7, v{vLane}
    v_lshlrev_b32 v{T+1}, 4, v{T+1}
    v_mul_u32_u24 v{T+2}, 1280, v{T}
    v_add_u32 v{T+2}, v{T+2}, v{T+1}
    """)
    for j in range(10):
        s.append(I(f"buffer_load_dwordx4 v[{X+4*j}:{X+4*j+3}], v{T+2}, s[{SX}:{SX+3}], 0 offen offset:{j*128}"))
        s.append(I(f"buffer_load_dwordx4 v[{W+4*j}:{W+4*j+3}], v{T+1}, s[{SGW}:{SGW+3}], 0 offen offset:{j*128}"))
    s += L(f"""
    v_mov_b32 v{A}, 0
    v_mov_b32 v{A+1}, 0
    s_mov_b32 s{sT1}, 0xffff0000
    s_waitcnt vmcnt(0)
    """)
    t = T + 4
    for r in range(40):
        s += L(f"""
        v_lshlrev_b32 v{t}, 16, v{X+r}
        v_and_b32 v{t+1}, s{sT1}, v{X+r}
        v_lshlrev_b32 v{t+2}, 16, v{W+r}
        v_and_b32 v{t+3}, s{sT1}, v{W+r}
        v_mul_f32 v{t}, v{t}, v{t+2}
        v_mul_f32 v{t+1}, v{t+1}, v{t+3}
        v_cvt_pk_bf16_f32 v{t}, v{t}, v{t+1}
        v_and_b32 v{t+1}, s{sT1}, v{t}
        v_lshlrev_b32 v{t}, 16, v{t}
        v_add_f32 v{A}, v{A}, v{t}
        v_add_f32 v{A+1}, v{A+1}, v{t+1}
        """)
    s += L(f"""
    v_add_f32 v{A}, v{A}, v{A+1}
    s_nop 1
    v_add_f32_dpp v{A}, v{A}, v{A} quad_perm:[1,0,3,2] row_mask:0xf bank_mask:0xf
    s_nop 1
    v_add_f32_dpp v{A}, v{A}, v{A} quad_perm:[2,3,0,1] row_mask:0xf bank_mask:0xf
    s_nop 1
    v_add_f32_dpp v{A}, v{A}, v{A} row_half_mirror row_mask:0xf bank_mask:0xf
    v_cvt_pk_bf16_f32 v{A}, v{A}, v{A}
    v_lshlrev_b32 v{A}, 16, v{A}
    v_mul_f32 v{A}, {f2h(-1.4426950408889634)}, v{A}
    v_exp_f32 v{A}, v{A}
    s_nop 0
    v_add_f32 v{A}, 1.0, v{A}
    v_rcp_f32 v{A}, v{A}
    s_nop 0
    v_cvt_pk_bf16_f32 v{A}, v{A}, v{A}
    v_lshlrev_b32 v{A}, 16, v{A}
    v_sub_f32 v{A+1}, 1.0, v{A}
    v_cvt_pk_bf16_f32 v{A+1}, v{A+1}, v{A+1}
    v_lshlrev_b32 v{A+1}, 16, v{A+1}
    v_lshlrev_b32 v{T}, 2, v{T}
    s_mov_b32 s{sT1}, {G_OFF:#x}
    buffer_store_dword v{A}, v{T}, s[{SWS}:{SWS+3}], s{sT1} offen
    s_add_u32 s{sT1}, s{sT1}, 8192
    buffer_store_dword v{A+1}, v{T}, s[{SWS}:{SWS+3}], s{sT1} offen
    """)
    return s

def emit():
    pro = setup()
    npro0 = len(pro)
    pro += sum(kv_dma(0), []) + sum(kv_dma(1), []) + kv_addr() + [waitvm("kv0"), I("s_barrier")] + kv_reads(0, 0, 0)
    M1, M2 = I("; @@KV"), I("; @@GU")
    segs = []
    for kind in range(2):
        full = resolve_vm(pro + [M1] + kv_part(kind) + [M2] + gu_part())
        body, q = add_lgkm(full[npro0:], slack=1)
        full = full[:npro0] + body
        verify(full, f"p1 kind{kind}")
        a, b = full.index(M1), full.index(M2)
        segs.append((full[:a], full[a + 1:b], full[b + 1:]))
    assert [i.t for i in segs[0][0]] == [i.t for i in segs[1][0]]
    assert [i.t for i in segs[0][2]] == [i.t for i in segs[1][2]]
    gp = g_part()
    verify(segs[0][0] + segs[0][1] + gp, "p1 g")
    s = segs[0][0] + L(f"s_cmp_ge_u32 s{sW}, 4\ns_cbranch_scc1 P1_V") + segs[0][1] + L("s_branch P1_GU")
    s += L("P1_V:") + segs[1][1] + L("P1_GU:")
    s += L(f"s_cmp_eq_u32 s{sVALID}, 0\ns_cbranch_scc1 P1_G") + segs[0][2] + L("s_branch P1_END")
    s += L("P1_G:") + gp + L("P1_END:")
    return s

if __name__ == "__main__":
    s = emit()
    print(len(s), "instructions")
```

```python
from common import *
from p1 import f2h

sW, sXCD, sSLOT, sH, sPI = 3, 4, 5, 6, 7
SX, SWQ, SWS = 8, 12, 16
soX, soW, mA, mW = 20, 21, 22, 23
sKoff, sVoff, sKi, sKbase = 24, 25, 26, 27
mK0, mK1, mV0, mV1 = 28, 29, 30, 31
sNA, sN, sBLK, sST = 32, 33, 34, 35
sT0, sT1, sT2, sTHR = 36, 37, 38, 39
sRET = 40
sSTB = 42
sP = 43
P = 44
sEXW, sEXR, sMLW, sMLR = 52, 53, 54, 55
sMASK = 60
vLane, vI16, vG, vD = 1, 2, 3, 4
vK, vV0, vV1, vQ = 5, 6, 7, 8
vTS = [9, 10]; vL = [11, 12]
vGA, vGB = 13, 14
vNEG = 15
vT = [16, 17, 18, 19, 20, 21, 22, 23]
E = 24
NM = [32, 36]
P1R = 40; P0R = [56, 48]
FR = 64
S = [128, 96]
Q = 160
O = 192
Sreg = lambda buf, a, qb: S[buf] + (a * 2 + qb) * 4
Qreg = lambda qb, u: Q + (qb * 4 + u) * 4
Oreg = lambda b, qb: O + (b * 2 + qb) * 4
KSLOT = [49152, 98304]
QS = 131072
QSLOT = [0, 49152, 98304]
vDX = [24, 25, 26, 27]; vDW = [28, 29]; vRX = [30, 31]; vRW = [32, 33, 34, 35]; vQW = 36
QSET = [64, 96]; QACC = 128

def lane_consts():
    return L(f"""
    v_lshrrev_b32 v{vT[0]}, 6, v0
    v_and_b32 v{vLane}, 63, v0
    v_readfirstlane_b32 s{sW}, v{vT[0]}
    v_and_b32 v{vI16}, 15, v0
    v_lshrrev_b32 v{vG}, 4, v{vLane}
    v_lshlrev_b32 v{vD}, 4, v{vLane}
    """)

def setup():
    s = L(f"""
    s_cmp_ge_u32 s2, 256
    s_cbranch_scc1 P2_END
    s_load_dwordx2 s[{P}:{P+1}], s[0:1], {A_X}
    s_load_dwordx2 s[{P+2}:{P+3}], s[0:1], {A_WQ}
    s_load_dwordx2 s[{P+4}:{P+5}], s[0:1], {A_WS}
    """) + lane_consts() + L(f"""
    s_and_b32 s{sXCD}, s2, 7
    s_lshr_b32 s{sSLOT}, s2, 3
    s_and_b32 s{sT0}, s{sSLOT}, 3
    s_lshl_b32 s{sH}, s{sXCD}, 2
    s_add_u32 s{sH}, s{sH}, s{sT0}
    s_lshr_b32 s{sPI}, s{sSLOT}, 2
    s_sub_u32 s{sNA}, 16, s{sPI}
    s_lshr_b32 s{sP}, s{sW}, 2
    s_lshl_b32 s{mA}, s{sW}, 12
    s_lshl_b32 s{mW}, s{sW}, 11
    s_add_u32 s{mW}, s{mW}, 32768
    """)
    t0, t1, t2, t3 = vT[0:4]
    s += L(f"""
    v_lshrrev_b32 v{t0}, 3, v{vLane}
    v_and_b32 v{t1}, 7, v{vLane}
    """)
    for n in range(4):
        s += L(f"""
        v_add_u32 v{t2}, {4*n}, v{vG}
        v_and_b32 v{t2}, 7, v{t2}
        v_xor_b32 v{t2}, v{t2}, v{t1}
        v_add_u32 v{t3}, {8*n}, v{t0}
        v_mul_u32_u24 v{t3}, 1280, v{t3}
        v_lshl_add_u32 v{vDX[n]}, v{t2}, 4, v{t3}
        v_subrev_u32 v{vDX[n]}, {n*1024}, v{vDX[n]}
        """)
    s += L(f"""
    s_and_b32 s{sT0}, s{sW}, 1
    s_lshl_b32 s{sT0}, s{sT0}, 2
    v_lshrrev_b32 v{t2}, 1, v{vI16}
    v_xor_b32 v{t2}, v{t2}, v{vG}
    v_xor_b32 v{t2}, s{sT0}, v{t2}
    v_lshlrev_b32 v{t2}, 5, v{t2}
    v_and_b32 v{t3}, 1, v{vLane}
    v_lshl_add_u32 v{t2}, v{t3}, 4, v{t2}
    v_lshl_add_u32 v{vDW[0]}, v{vG}, 13, v{t2}
    v_add_u32 v{vDW[1]}, {4*8192-1024}, v{vDW[0]}
    """)
    s += L(f"""
    s_sub_u32 s{sT0}, 15, s{sPI}
    s_cmp_lt_u32 s{sW}, 4
    s_cselect_b32 s{sT1}, s{sT0}, s{sPI}
    s_lshl_b32 s{sT1}, s{sT1}, 7
    s_and_b32 s{sT2}, s{sW}, 3
    s_lshl_b32 s{sT2}, s{sT2}, 5
    s_add_u32 s{sT1}, s{sT1}, s{sT2}
    s_mul_i32 s{soX}, s{sT1}, 1280
    s_lshl_b32 s{soW}, s{sW}, 16
    s_lshl_b32 s{sT1}, s{sH}, 8
    s_add_u32 s{soW}, s{soW}, s{sT1}
    s_waitcnt lgkmcnt(0)
    """)
    s += srd(SX, P, SZ_X) + srd(SWQ, P + 2, SZ_WQ) + srd(SWS, P + 4, WS_BYTES)
    return s

def q_dma(stage):
    buf = QSLOT[stage % 3]
    tag = f"q{stage}"
    g1 = [[I(f"s_add_u32 m0, s{mA}, {buf}"), I(f"s_nop 0"), dma(vDX[0], SX, soX, 0, tag)]] + [[dma(vDX[n], SX, soX, n * 1024, tag)] for n in range(1, 4)]
    g1[-1].append(I(f"s_add_u32 s{soX}, s{soX}, 128"))
    g2 = [[I(f"s_add_u32 m0, s{mW}, {buf}"), I(f"s_nop 0"), dma(vDW[0], SWQ, soW, 0, tag)], [dma(vDW[1], SWQ, soW, 1024, tag), I(f"s_add_u32 s{soW}, s{soW}, {64*8192}")]]
    return g1 + g2

def setup2():
    t0, t1, t2, t3 = vT[0:4]
    s = L(f"""
    s_and_b32 s{sT0}, s{sW}, 3
    s_lshl_b32 s{sT1}, s{sT0}, 13
    v_lshrrev_b32 v{t0}, 1, v{vI16}
    v_xor_b32 v{t0}, v{t0}, v{vG}
    v_lshlrev_b32 v{t0}, 4, v{t0}
    v_lshl_add_u32 v{t0}, v{vI16}, 7, v{t0}
    v_add_u32 v{vRX[0]}, s{sT1}, v{t0}
    v_xor_b32 v{vRX[1]}, 64, v{vRX[0]}
    s_lshl_b32 s{sT1}, s{sP}, 2
    v_lshrrev_b32 v{t0}, 2, v{vI16}
    v_and_b32 v{t1}, 1, v{vG}
    v_lshl_add_u32 v{t1}, v{t1}, 2, v{t0}
    v_xor_b32 v{t1}, s{sT1}, v{t1}
    v_lshl_add_u32 v{t0}, v{vG}, 3, v{t0}
    v_lshlrev_b32 v{t0}, 8, v{t0}
    v_and_b32 v{t2}, 3, v{vI16}
    v_lshl_add_u32 v{t0}, v{t2}, 3, v{t0}
    v_add_u32 v{t0}, 32768, v{t0}
    """)
    for j in range(4):
        s += L(f"""
        v_xor_b32 v{t2}, {j}, v{t1}
        v_lshl_add_u32 v{vRW[j]}, v{t2}, 5, v{t0}
        """)
    s += L(f"""
    s_cmp_lt_u32 s{sT0}, 2
    s_cselect_b32 s{sT1}, 0, {QS}
    s_and_b32 s{sT2}, s{sT0}, 1
    s_lshl_b32 s{sT2}, s{sT2}, 14
    s_add_u32 s{sT1}, s{sT1}, s{sT2}
    s_lshl_b32 s{sT2}, s{sP}, 11
    s_add_u32 s{sT1}, s{sT1}, s{sT2}
    v_add_u32 v{vQW}, s{sT1}, v{vD}
    s_lshl_b32 s{sT1}, s{sT0}, 13
    v_add_u32 v{vQ}, s{sT1}, v{vD}
    s_lshl_b32 s{sT1}, s{sP}, 14
    v_add_u32 v{vV1}, s{sT1}, v{vD}
    v_add_u32 v{vK}, {KSLOT[0]}, v{vV1}
    s_mul_i32 s{sT1}, s{sP}, 49152
    s_add_u32 s{sT1}, s{sT1}, 32768
    v_add_u32 v{vV0}, s{sT1}, v{vD}
    s_add_u32 s{mK0}, s{mA}, {KSLOT[0]}
    s_add_u32 s{mK1}, s{mA}, {KSLOT[1]}
    s_mov_b32 s{mV1}, s{mA}
    s_lshl_b32 s{sT1}, s{sP}, 15
    s_add_u32 s{mV0}, s{mA}, s{sT1}
    s_add_u32 s{mV0}, s{mV0}, 32768
    s_lshl_b32 s{sKbase}, s{sH}, 19
    s_add_u32 s{sKbase}, s{sKbase}, s{mA}
    s_mov_b32 s{sKoff}, s{sKbase}
    s_mov_b32 s{sKi}, 0
    s_mov_b32 s{sTHR}, {f2h(256.0)}
    v_mov_b32 v{vNEG}, {f2h(-3.0e38)}
    """)
    s += L(f"""
    s_lshl_b32 s{sT1}, s{sH}, 15
    s_add_u32 s{sT1}, s{sT1}, {AF_OFF + 27*16384:#x}
    s_lshl_b32 s{sT2}, s{sT0}, 12
    s_add_u32 s{sT1}, s{sT1}, s{sT2}
    s_lshl_b32 s{sT2}, s{sP}, 11
    s_add_u32 s{sT1}, s{sT1}, s{sT2}
    s_mul_i32 s{sT2}, s{sPI}, {AF_MT}
    s_add_u32 s{sSTB}, s{sT1}, s{sT2}
    s_sub_u32 s{sT2}, 15, s{sPI}
    s_mul_i32 s{sT2}, s{sT2}, {AF_MT}
    s_add_u32 s{sST}, s{sT1}, s{sT2}
    """)
    s += L(f"""
    s_lshl_b32 s{sT1}, s{sT0}, 5
    s_lshl_b32 s{sT2}, s{sP}, 4
    s_add_u32 s{sT1}, s{sT1}, s{sT2}
    v_add_u32 v{t0}, s{sT1}, v{vI16}
    v_lshlrev_b32 v{t0}, 2, v{t0}
    s_lshl_b32 s{sT1}, s{sPI}, 9
    s_add_u32 s{sT1}, s{sT1}, {G_OFF:#x}
    buffer_load_dword v{vGB}, v{t0}, s[{SWS}:{SWS+3}], s{sT1} offen
    s_sub_u32 s{sT2}, 15, s{sPI}
    s_lshl_b32 s{sT2}, s{sT2}, 9
    s_add_u32 s{sT2}, s{sT2}, {G_OFF:#x}
    buffer_load_dword v{vGA}, v{t0}, s[{SWS}:{SWS+3}], s{sT2} offen
    """)
    s += L(f"""
    s_lshl_b32 s{sT1}, s{sT0}, 5
    s_lshl_b32 s{sT2}, s{sP}, 6
    s_sub_i32 s{sT1}, s{sT1}, s{sT2}
    v_lshlrev_b32 v{t1}, 2, v{vG}
    v_sub_u32 v{t1}, v{vI16}, v{t1}
    v_add_u32 v{t1}, s{sT1}, v{t1}
    """)
    for d in range(5):
        for rr in range(4):
            m = sMASK + 2 * (d * 4 + rr)
            s.append(I(f"v_cmp_gt_i32 s[{m}:{m+1}], {16*(d-1)+rr}, v{t1}"))
    import p3
    s += p3.prefill(vD, 40, SWS, sT1, sT2, sW)
    return s

def q_adv(frm, to):
    d = QSLOT[to % 3] - QSLOT[frm % 3]
    op = "v_add_u32" if d >= 0 else "v_subrev_u32"
    return [I(f"{op} v{r}, {abs(d):#x}, v{r}") for r in vRX + vRW]

def q_reads(kk, st):
    base = QSET[st]
    x = lambda tt: rd128(base + 4 * tt, vRX[kk], tt * 2048)
    w = lambda j: [rdtr(base + 16 + 4 * j, vRW[j], kk * 8192), rdtr(base + 16 + 4 * j + 2, vRW[j], kk * 8192 + 1024)]
    return w(0) + [x(0)] + w(1) + w(2) + w(3) + [x(t) for t in range(1, 4)]

def q_mfmas(st, first):
    base = QSET[st]
    return [mf(QACC + (tt * 4 + j) * 4, base + 16 + 4 * j, base + 4 * tt, 0 if first else None) for tt in range(4) for j in range(4)]

def k_dma(slot, tag=None):
    m = [mK0, mK1][slot]
    g = [[I(f"s_mov_b32 m0, s{m}"), I(f"s_add_u32 s{sT2}, s{sKoff}, {VF_OFF:#x}"), dma(vD, SWS, sKoff, 0, tag)]] + [[dma(vD, SWS, sKoff, n * 1024, tag)] for n in range(1, 4)]
    g[-1] += L(f"""
    s_add_u32 s{sKoff}, s{sKoff}, 32768
    s_add_u32 s{sKi}, s{sKi}, 1
    s_cmp_eq_u32 s{sKi}, s{sNA}
    s_cselect_b32 s{sKoff}, s{sKbase}, s{sKoff}
    s_cmp_ge_u32 s{sKi}, 17
    s_cselect_b32 s{sKoff}, 0x70000000, s{sKoff}
    """)
    return g

def v_dma(slot, tag=None):
    m = [mV0, mV1][slot]
    g = [[I(f"s_mov_b32 m0, s{m}"), I("s_nop 0"), dma(vD, SWS, sVoff, 0, tag)]] + [[dma(vD, SWS, sVoff, n * 1024, tag)] for n in range(1, 4)]
    g[-1] += L(f"s_mov_b32 s{sVoff}, s{sT2}")
    return g

QSC = 1.4426950408889634 * 128 ** -0.5

def qproj():
    s = []
    for st in range(10):
        s += weave(q_mfmas(0, st == 0), spread(q_reads(1, 1), 0, 12))
        if st < 9:
            s += [waitvm(f"q{st+1}", lgkm=True), I("s_barrier")]
            r = q_adv(st, st + 1) + q_reads(0, 0)
        else:
            s += [I("s_waitcnt lgkmcnt(0)"), I("s_barrier")]
            r = []
        if st + 3 < 10: d = q_dma(st + 3)
        elif st == 7: d = k_dma(0, "k0") + [L(f"s_mov_b32 s{sVoff}, s{sT2}")]
        elif st == 8: d = k_dma(1, "k1")
        else: d = v_dma(0, "v0")
        s += weave(q_mfmas(1, False), (spread(r, 0, 14) if r else []) + spread(d, 1, 13))
    s += L(f"s_mov_b32 s{sT0}, {f2h(QSC)}\ns_nop 6")
    k = 0
    for tt in range(4):
        for jj in range(2):
            a = QACC + (tt * 4 + 2 * jj) * 4
            s += [I(f"v_mul_f32 v{a+r}, s{sT0}, v{a+r}") for r in range(8)]
            tmp = 64 + 4 * (k % 8); k += 1
            s += pack2(tmp, a, a + 4)
            s.append(I(f"ds_write_b128 v{vQW}, v[{tmp}:{tmp+3}] offset:{tt*4096 + jj*1024}"))
    s += [waitvm("k0", lgkm=True), I("s_barrier")]
    s += [rd128(Qreg(qb, u), vQ, (qb * 4 + u) * 1024) for qb in range(2) for u in range(4)]
    s += L(f"""
    v_add_u32 v{vQ}, {QS}, v{vQ}
    s_mov_b32 s{sBLK}, 0
    s_sub_u32 s{sN}, s{sNA}, 1
    """)
    return s

def kread(n, slot):
    return rd128(FR + 4 * (n % 8), vK, slot * 49152 + n * 1024)
def vread(f, slot):
    return rd128(FR + 4 * (f % 8), [vV0, vV1][slot], f * 1024)

def qk_mfmas(buf, zero_c):
    out = []
    for n in range(16):
        a, u = n >> 2, n & 3
        for qb in range(2):
            c = None if u else (0 if zero_c else NM[qb])
            out.append(mf(Sreg(buf, a, qb), FR + 4 * (n % 8), Qreg(qb, u), c))
    return out

def pv_mfmas(par):
    out = []
    for f in range(16):
        u, b = f >> 3, f & 7
        for qb in range(2):
            pr = (P0R[par] if u == 0 else P1R) + 4 * qb
            out.append(mf(Oreg(b, qb), FR + 4 * (f % 8), pr))
    return out

def softmax_half(buf, hf, pbase):
    pairs = [(a, qb, r) for a in (2 * hf, 2 * hf + 1) for r in (0, 2) for qb in range(2)]
    ops = []
    started = [hf == 1, hf == 1]
    def tail(p):
        a, qb, r = pairs[p]
        e = E + 2 * (p % 4)
        o = []
        if started[qb]:
            o += [I(f"v_add_f32 v{vTS[qb]}, v{vTS[qb]}, v{e}"), I(f"v_add_f32 v{vTS[qb]}, v{vTS[qb]}, v{e+1}")]
        else:
            o += [I(f"v_add_f32 v{vTS[qb]}, v{e}, v{e+1}")]; started[qb] = True
        o.append(cvtpk(pbase + 4 * qb + 2 * (a & 1) + r // 2, e, e + 1))
        return o
    for p, (a, qb, r) in enumerate(pairs):
        e = E + 2 * (p % 4)
        sr = Sreg(buf, a, qb) + r
        ops += [I(f"v_exp_f32 v{e}, v{sr}"), I(f"v_exp_f32 v{e+1}, v{sr+1}")]
        if p >= 1: ops += tail(p - 1)
    ops += [I("s_nop 0")] + tail(len(pairs) - 1)
    return ops

def xlane(op, x, t):
    return L(f"""
    v_mov_b32 v{t}, v{x}
    s_nop 1
    v_permlane32_swap_b32 v{t}, v{x}
    s_nop 1
    {op} v{x}, v{x}, v{t}
    v_mov_b32 v{t}, v{x}
    s_nop 1
    v_permlane16_swap_b32 v{t}, v{x}
    s_nop 1
    {op} v{x}, v{x}, v{t}
    """)

def rowmax(buf, qb, dst):
    regs = [Sreg(buf, a, qb) + r for a in range(4) for r in range(4)]
    s = [I(f"v_max3_f32 v{dst}, v{regs[0]}, v{regs[1]}, v{regs[2]}")]
    for k in range(3, 15, 2):
        s.append(I(f"v_max3_f32 v{dst}, v{dst}, v{regs[k]}, v{regs[k+1]}"))
    s.append(I(f"v_max_f32 v{dst}, v{dst}, v{regs[15]}"))
    return s

def mask_block(buf):
    s = []
    for a in range(4):
        for qb in range(2):
            for rr in range(4):
                m = sMASK + 2 * ((a - qb + 1) * 4 + rr)
                r = Sreg(buf, a, qb) + rr
                s.append(I(f"v_cndmask_b32 v{r}, v{r}, v{vNEG}, s[{m}:{m+1}]"))
    return s

def check_ops():
    return L(f"""
    v_max_f32 v{vT[0]}, v{vTS[0]}, v{vTS[1]}
    v_cmp_lt_f32 vcc, s{sTHR}, v{vT[0]}
    """)

def rare(par):
    cur, nxt = par, par ^ 1
    s = L(f"P2_RARE{par}:\ns_nop 7")
    for qb in range(2):
        d = vT[qb]
        s += rowmax(cur, qb, d) + xlane("v_max_f32", d, vT[2])
        s += L(f"v_max_f32 v{d}, 0, v{d}\nv_sub_f32 v{vT[2+qb]}, 0, v{d}" if False else f"v_max_f32 v{d}, 0, v{d}")
    for qb in range(2):
        d = vT[qb]; f = vT[4 + qb]
        s += L(f"v_exp_f32 v{f}, -v{d}")
        for buf in (cur, nxt):
            for a in range(4):
                for r in range(4):
                    x = Sreg(buf, a, qb) + r
                    s.append(I(f"v_sub_f32 v{x}, v{x}, v{d}"))
        for r in range(4):
            s.append(I(f"v_sub_f32 v{NM[qb]+r}, v{NM[qb]+r}, v{d}"))
        for b in range(8):
            for r in range(4):
                x = Oreg(b, qb) + r
                s.append(I(f"v_mul_f32 v{x}, v{x}, v{f}"))
        s.append(I(f"v_mul_f32 v{vL[qb]}, v{vL[qb]}, v{f}"))
    s += softmax_half(cur, 0, P0R[par]) + softmax_half(cur, 1, P1R)
    s += L(f"s_nop 1\ns_setpc_b64 s[{sRET}:{sRET+1}]")
    return s

def ladd():
    return [I(f"v_add_f32 v{vL[qb]}, v{vL[qb]}, v{vTS[qb]}") for qb in range(2)]

NPRE = 6
def it(par):
    nx = par ^ 1
    qk = qk_mfmas(nx, False)
    pv = pv_mfmas(par)
    fa = [(2 * n - 12, kread(n, nx)) for n in range(NPRE, 16)] + [(2 * (16 + f) - 12, vread(f, par)) for f in range(0, 6)]
    fa = sorted(fa, key=lambda x: x[0])
    d = k_dma(par) + v_dma(nx)
    sm = softmax_half(par, 1, P1R)
    A = weave(qk, fa + spread(d, 1, 17) + spread(sm, 0, 29) + [(29, check_ops())] + [(30, L(f"s_cmp_eq_u32 s{sN}, 1"))])
    mid = L(f"""
    s_cbranch_vccnz P2_IR{par}
    P2_IRB{par}:
    s_cbranch_scc1 P2_IM{par}
    P2_IMB{par}:
    """)
    fb = [(2 * f - 12, vread(f, par)) for f in range(6, 16)]
    bar = L("s_waitcnt vmcnt(0) lgkmcnt(0)\ns_barrier") + [kread(0, par), kread(1, par)]
    fb += [(22, bar)] + [(24 + 2 * j, kread(2 + j, par)) for j in range(NPRE - 2)]
    sm = ladd() + softmax_half(nx, 0, P0R[nx])
    B = weave(pv, fb + spread(sm, 0, 30) + [(29, L(f"s_sub_u32 s{sN}, s{sN}, 1\ns_cmp_eq_u32 s{sN}, 0"))])
    stubs = L(f"""
    P2_IR{par}:
    s_call_b64 s[{sRET}:{sRET+1}], P2_RARE{par}
    s_cmp_eq_u32 s{sN}, 1
    s_branch P2_IRB{par}
    P2_IM{par}:
    s_nop 7
    """) + mask_block(nx) + L(f"s_branch P2_IMB{par}")
    return A, mid, B, stubs

def pro(par, first):
    nx = par ^ 1
    tag = "F" if first else str(par)
    qk = qk_mfmas(par, True)
    rd = [(max(-1, 2 * n - 12), kread(n, par)) for n in range(16)]
    z = [I(f"v_mov_b32 v{O+k}, 0") for k in range(64)] + [I(f"v_mov_b32 v{vL[qb]}, 0") for qb in range(2)]
    A = weave(qk, rd + spread(z, 0, 32) + [(30, L(f"s_cmp_eq_u32 s{sN}, 0"))])
    A += L(f"""
    s_waitcnt vmcnt({0 if first else 4}) lgkmcnt(0)
    s_barrier
    """) + [kread(n, nx) for n in range(NPRE)]
    mid = L(f"""
    s_nop 1
    s_cbranch_scc1 P2_PM{tag}
    P2_PMB{tag}:
    """)
    B = []
    for qb in range(2):
        B += rowmax(par, qb, vT[qb])
    for qb in range(2):
        B += xlane("v_max_f32", vT[qb], vT[2])
        B += L(f"v_max_f32 v{vT[qb]}, {f2h(-1.0e30)}, v{vT[qb]}")
        B += [I(f"v_sub_f32 v{NM[qb]+r}, 0, v{vT[qb]}") for r in range(4)]
        B += [I(f"v_sub_f32 v{Sreg(par, a, qb)+r}, v{Sreg(par, a, qb)+r}, v{vT[qb]}") for a in range(4) for r in range(4)]
    B += softmax_half(par, 0, P0R[par])
    B += L(f"s_cmp_eq_u32 s{sN}, 0")
    stubs = L(f"P2_PM{tag}:") + mask_block(par) + L(f"s_branch P2_PMB{tag}")
    return A, mid, B, stubs

def fin(par):
    nx = par ^ 1
    A = sum(k_dma(par), [])
    A += [vread(f, par) for f in range(6)]
    A += [rd128(Qreg(qb, u), vQ, (qb * 4 + u) * 1024) for qb in range(2) for u in range(4)]
    A += softmax_half(par, 1, P1R) + check_ops()
    def exaddr(dst, wreg):
        if par == 1:
            lo = f"s_lshl_b32 s{dst}, s{wreg}, 13"
        else:
            lo = f"""s_lshl_b32 s{dst}, s{wreg}, 13
            s_cmp_ge_u32 s{wreg}, 2
            s_cselect_b32 s{sT1}, 2, 1
            s_lshl_b32 s{sT1}, s{sT1}, 15
            s_add_u32 s{dst}, s{dst}, s{sT1}"""
        return L(lo + f"""
        s_lshl_b32 s{sT1}, s{wreg}, 13
        s_add_u32 s{sT1}, s{sT1}, {QS - 32768}
        s_cmp_lt_u32 s{wreg}, 4
        s_cselect_b32 s{dst}, s{dst}, s{sT1}
        """)
    mlb = 0 if nx == 1 else 32768
    A += L(f"s_xor_b32 s{sT0}, s{sW}, 4") + exaddr(sEXW, sW) + exaddr(sEXR, sT0)
    A += L(f"""
    s_lshl_b32 s{sMLW}, s{sW}, 9
    s_add_u32 s{sMLW}, s{sMLW}, {mlb}
    s_lshl_b32 s{sMLR}, s{sT0}, 9
    s_add_u32 s{sMLR}, s{sMLR}, {mlb}
    """)
    mid = L(f"""
    s_cbranch_vccnz P2_FR{par}
    P2_FRB{par}:
    """)
    stubs = L(f"""
    P2_FR{par}:
    s_call_b64 s[{sRET}:{sRET+1}], P2_RARE{par}
    s_branch P2_FRB{par}
    """)
    post = ladd() + xlane("v_add_f32", vL[0], vT[0]) + xlane("v_add_f32", vL[1], vT[1])
    aW, aR, mW_, mR_ = vT[4], vT[5], vT[6], vT[7]
    post += L(f"""
    v_add_u32 v{aW}, s{sEXW}, v{vD}
    v_add_u32 v{aR}, s{sEXR}, v{vD}
    v_lshrrev_b32 v{mR_}, 1, v{vD}
    v_add_u32 v{mW_}, s{sMLW}, v{mR_}
    v_add_u32 v{mR_}, s{sMLR}, v{mR_}
    s_cmp_eq_u32 s{sP}, 0
    s_cselect_b64 s[{sRET}:{sRET+1}], -1, 0
    """)
    post += L(f"""
    v_cndmask_b32 v{E}, v{NM[0]}, v{NM[1]}, s[{sRET}:{sRET+1}]
    v_cndmask_b32 v{E+1}, v{vL[0]}, v{vL[1]}, s[{sRET}:{sRET+1}]
    v_cndmask_b32 v{E+2}, v{NM[1]}, v{NM[0]}, s[{sRET}:{sRET+1}]
    v_cndmask_b32 v{E+3}, v{vL[1]}, v{vL[0]}, s[{sRET}:{sRET+1}]
    ds_write_b64 v{mW_}, v[{E}:{E+1}]
    """)
    B = weave(pv_mfmas(par), [(2 * f - 12, vread(f, par)) for f in range(6, 16)] + spread(post, 0, 30))
    B += L(f"""
    s_waitcnt lgkmcnt(0)
    s_barrier
    ds_read_b64 v[{E+4}:{E+5}], v{mR_}
    s_cmp_eq_u32 s{sP}, 0
    s_nop 3
    """)
    X = S[par]
    def merge(p):
        m = [I(f"ds_write_b128 v{aW}, v[{Oreg(b, 1-p)}:{Oreg(b, 1-p)+3}] offset:{b*1024}") for b in range(8)]
        m += L(f"""
        v_min_f32 v{E}, v{E+2}, v{E+4}
        v_sub_f32 v{E+1}, v{E}, v{E+2}
        v_sub_f32 v{E}, v{E}, v{E+4}
        v_exp_f32 v{E+1}, v{E+1}
        v_exp_f32 v{E}, v{E}
        s_nop 0
        v_mul_f32 v{E+3}, v{E+3}, v{E+1}
        v_fma_f32 v{E+3}, v{E+5}, v{E}, v{E+3}
        v_rcp_f32 v{E+3}, v{E+3}
        s_nop 0
        v_mul_f32 v{E+3}, v{E+3}, v{vGA}
        v_mul_f32 v{E+1}, v{E+1}, v{E+3}
        v_mul_f32 v{E}, v{E}, v{E+3}
        v_mov_b32 v{vGA}, v{vGB}
        s_waitcnt lgkmcnt(0)
        s_barrier
        """)
        m += [rd128(X + 4 * b, aR, b * 1024) for b in range(8)]
        m += sum(v_dma(nx), [])
        for u in range(4):
            for b in (2 * u, 2 * u + 1):
                o = Oreg(b, p)
                m += [I(f"v_mul_f32 v{o+r}, v{o+r}, v{E+1}") for r in range(4)]
                m += [I(f"v_fma_f32 v{o+r}, v{X+4*b+r}, v{E}, v{o+r}") for r in range(4)]
            tmp = FR + 4 * u
            m += pack2(tmp, Oreg(2 * u, p), Oreg(2 * u + 1, p))
            if u == 2: m.append(I(f"s_add_u32 s{sST}, s{sST}, 16384"))
            m.append(I(f"buffer_store_dwordx4 v[{tmp}:{tmp+3}], v{vD}, s[{SWS}:{SWS+3}], s{sST} offen offset:{(u&1)*1024}"))
        return m
    end = L(f"""
    s_cmp_eq_u32 s{sBLK}, 1
    s_cbranch_scc1 P2_END
    s_mov_b32 s{sBLK}, 1
    s_mov_b32 s{sST}, s{sSTB}
    s_mov_b32 s{sN}, s{sPI}
    """)
    return A, mid, B, stubs, merge(0), merge(1), end

def emit():
    s0 = setup()
    pre = resolve_vm(s0 + sum(q_dma(0) + q_dma(1) + q_dma(2), []) + setup2() + [waitvm("q0"), I("s_barrier")] + q_reads(0, 0) + qproj())
    body, q = add_lgkm(pre[len(s0):], slack=1)
    pre = pre[:len(s0)] + body
    def W(seq, q):
        return add_lgkm(seq, q, slack=1)
    A, mid, B, st = pro(0, True)
    A, q = W(A, q); B, q = W(B, q); PF = (A, mid, B, st); qloop = q
    IT, FN, PR = {}, {}, {}
    for par in range(2):
        A, mid, B, st = it(par)
        A, q = W(A, qloop); B, q = W(B, q)
        assert qsig(q) == qsig(qloop), (qsig(q), qsig(qloop))
        IT[par] = (A, mid, B, st)
        A, mid, B, st, m0, m1, end = fin(par)
        A, q = W(A, qloop); B, q = W(B, q); m0, q0 = W(m0, q); m1, q1 = W(m1, q)
        assert not q0 and not q1
        FN[par] = (A, mid, B, st, m0, m1, end)
        A, mid, B, st = pro(par, False)
        A, q = W(A, []); B, q = W(B, q)
        assert qsig(q) == qsig(qloop)
        PR[par] = (A, mid, B, st)
    RA = {par: rare(par) for par in range(2)}
    seg = lambda t: t[0] + t[1] + t[2]
    callseg = lambda t, par: t[0] + t[1][:1] + RA[par] + t[1][1:] + t[2]
    maskit = lambda par: IT[par][0] + IT[par][1] + IT[par][3][4:] + IT[par][2]
    for p in range(2):
        f = lambda par: seg(FN[par]) + FN[par][4 + p] + FN[par][6]
        path = pre + seg(PF) + seg(IT[0]) + seg(IT[1]) + maskit(0) + f(1) + seg(PR[0]) + callseg(IT[0], 0) + callseg(IT[1], 1) + f(0) \
            + PR[1][0] + PR[1][1] + PR[1][3] + PR[1][2] + callseg(FN[1], 1) + FN[1][4 + p] + FN[1][6] + seg(PR[0]) + callseg(FN[0], 0) + FN[0][4 + p] + seg(PR[1]) + maskit(1) + f(0)
        verify(path, f"p2 path p={p}")
    s = pre + seg(PF) + L("s_cbranch_scc1 P2_FIN0\n.p2align 6\nP2_IT0:") + seg(IT[0]) + L("s_cbranch_scc1 P2_FIN1\nP2_IT1:") + seg(IT[1]) + L("s_cbranch_scc0 P2_IT0")
    for par in range(2):
        s += L(f"P2_FIN{par}:") + seg(FN[par]) + L(f"s_cbranch_scc0 P2_M1_{par}") + FN[par][4] + L(f"s_branch P2_ME{par}\nP2_M1_{par}:") + FN[par][5] + L(f"P2_ME{par}:") + FN[par][6]
        s += seg(PR[par ^ 1]) + L(f"s_cbranch_scc1 P2_FIN{par^1}\ns_branch P2_IT{par^1}")
    s += PF[3] + IT[0][3] + IT[1][3] + FN[0][3] + FN[1][3] + PR[0][3] + PR[1][3] + RA[0] + RA[1]
    s += L("P2_END:")
    return s

if __name__ == "__main__":
    s = emit()
    print(len(s), "instructions")
```

```python
from common import *
from p1 import f2h

SLOT = 36864
NSLOT = 4
LDS = SLOT * NSLOT
NST = 23
PART_WG = 36864
sW, sXCD, sSLOT, sC, sMT, sNT = 3, 4, 5, 6, 7, 26
SWS, SWD, SWO, SOUT = 8, 12, 16, 20
soD, mD = 24, 25
sT0, sT1, sT2, sKP, sMH, sNH = 27, 28, 29, 30, 31, 32
so2, sPB, sCNT, sMSK = 33, 34, 35, 36
P = 44
vLane, vI16, vG, vD = 1, 2, 3, 4
vDW = [5, 6, 7, 8, 9]
vA = [10, 11, 12, 13]
vW = [[14, 15], [16, 17], [18, 19], [20, 21]]
vOM = [22, 23, 24, 25]
vT = [26, 27, 28, 29, 30, 31]
SET = [32, 68]
ACC = 104
X = 184
acc = lambda j, q: ACC + (q * 5 + j) * 4

def setup():
    s = L(f"""
    s_cmp_ge_u32 s2, 256
    s_cbranch_scc1 P3_END
    s_load_dwordx2 s[{P}:{P+1}], s[0:1], {A_WS}
    s_load_dwordx2 s[{P+2}:{P+3}], s[0:1], {A_WD}
    s_load_dwordx2 s[{P+4}:{P+5}], s[0:1], {A_WO}
    s_load_dwordx2 s[{P+6}:{P+7}], s[0:1], {A_OUT}
    v_lshrrev_b32 v{vT[0]}, 6, v0
    v_and_b32 v{vLane}, 63, v0
    v_readfirstlane_b32 s{sW}, v{vT[0]}
    v_and_b32 v{vI16}, 15, v0
    v_lshrrev_b32 v{vG}, 4, v{vLane}
    v_lshlrev_b32 v{vD}, 4, v{vLane}
    s_and_b32 s{sXCD}, s2, 7
    s_lshr_b32 s{sSLOT}, s2, 3
    s_and_b32 s{sC}, s{sXCD}, 3
    s_lshr_b32 s{sMT}, s{sXCD}, 2
    s_lshl_b32 s{sMT}, s{sMT}, 3
    s_lshr_b32 s{sT0}, s{sSLOT}, 2
    s_add_u32 s{sMT}, s{sMT}, s{sT0}
    s_and_b32 s{sNT}, s{sSLOT}, 3
    s_lshr_b32 s{sKP}, s{sW}, 2
    s_lshr_b32 s{sMH}, s{sW}, 1
    s_and_b32 s{sMH}, s{sMH}, 1
    s_and_b32 s{sNH}, s{sW}, 1
    """)
    return s

def setup_dma(kp):
    t0, t1, t2, t3 = vT[0:4]
    s = []
    if kp == 0:
        s += L(f"""
        s_mul_i32 s{sT0}, s{sW}, 320
        s_mov_b32 s{sT1}, 3277
        """)
        for n in range(5):
            s += L(f"""
            v_add_u32 v{t0}, s{sT0}, v{vLane}
            v_add_u32 v{t0}, {64*n}, v{t0}
            v_mul_lo_u32 v{t1}, v{t0}, s{sT1}
            v_lshrrev_b32 v{t1}, 16, v{t1}
            v_mul_u32_u24 v{t2}, 20, v{t1}
            v_sub_u32 v{t2}, v{t0}, v{t2}
            v_lshrrev_b32 v{t3}, 1, v{t1}
            v_and_b32 v{t3}, 2, v{t3}
            v_xor_b32 v{t2}, v{t2}, v{t3}
            v_mul_u32_u24 v{t1}, 1280, v{t1}
            v_lshl_add_u32 v{vDW[n]}, v{t2}, 4, v{t1}
            """)
            if 0 < n < 4: s += L(f"v_subrev_u32 v{vDW[n]}, {n*1024}, v{vDW[n]}")
        s += L(f"""
        s_mul_i32 s{sT0}, s{sNT}, 320
        s_mul_i32 s{soD}, s{sC}, {7*64*1280}
        s_add_u32 s{soD}, s{soD}, s{sT0}
        s_mul_i32 s{so2}, s{sC}, {16*64*1280}
        s_add_u32 s{so2}, s{so2}, s{sT0}
        s_mul_i32 s{mD}, s{sW}, 5120
        s_add_u32 s{mD}, s{mD}, 16384
        """)
    else:
        s += L(f"""
        s_mul_i32 s{sT0}, s{sMT}, {AF_MT}
        s_add_u32 s{sT0}, s{sT0}, {AF_OFF:#x}
        s_sub_u32 s{mD}, s{sW}, 4
        s_lshl_b32 s{mD}, s{mD}, 12
        s_add_u32 s{sT0}, s{sT0}, s{mD}
        s_mul_i32 s{soD}, s{sC}, {7*16384}
        s_add_u32 s{soD}, s{soD}, s{sT0}
        s_lshl_b32 s{so2}, s{sC}, 18
        s_add_u32 s{so2}, s{so2}, s{sT0}
        s_add_u32 s{so2}, s{so2}, {27*16384}
        """)
    s += L("s_waitcnt lgkmcnt(0)") + srd(SWS, P, WS_BYTES) + srd(SWD, P + 2, SZ_WD) + srd(SWO, P + 4, SZ_WO) + srd(SOUT, P + 6, SZ_OUT)
    return s

def st_dma(kp, st):
    buf = (st % NSLOT) * SLOT
    tag = f"d{st}"
    so = soD if st < 7 else so2
    if kp == 0:
        R = SWD if st < 7 else SWO
        g = [[I(f"s_add_u32 m0, s{mD}, {buf}"), I("s_nop 0"), dma(vDW[0], R, so, 0, tag)]] + [[dma(vDW[n], R, so, n * 1024, tag)] for n in range(1, 4)]
        g += [[I(f"s_add_u32 m0, s{mD}, {buf + 4096}"), I("s_nop 0"), dma(vDW[4], R, so, 0, tag), I(f"s_add_u32 s{so}, s{so}, {64*1280}")]]
    else:
        g = [[I(f"s_add_u32 m0, s{mD}, {buf}"), I("s_nop 0"), dma(vD, SWS, so, 0, tag)]] + [[dma(vD, SWS, so, n * 1024, tag)] for n in range(1, 4)]
        g[-1].append(I(f"s_add_u32 s{so}, s{so}, 16384"))
    return g

def setup2():
    t0, t1, t2, t3 = vT[0:4]
    s = L(f"""
    s_lshl_b32 s{sT0}, s{sMH}, 13
    s_lshl_b32 s{sT1}, s{sKP}, 10
    s_add_u32 s{sT0}, s{sT0}, s{sT1}
    v_add_u32 v{vA[0]}, s{sT0}, v{vD}
    s_mul_i32 s{sT0}, s{sKP}, {32*320}
    s_mul_i32 s{sT1}, s{sNH}, 160
    s_add_u32 s{sT0}, s{sT0}, s{sT1}
    s_add_u32 s{sT0}, s{sT0}, 16384
    v_lshrrev_b32 v{t0}, 2, v{vI16}
    v_lshl_add_u32 v{t0}, v{vG}, 2, v{t0}
    v_mul_u32_u24 v{t0}, 320, v{t0}
    v_and_b32 v{t1}, 3, v{vI16}
    v_lshl_add_u32 v{t0}, v{t1}, 3, v{t0}
    v_add_u32 v{t0}, s{sT0}, v{t0}
    v_and_b32 v{t1}, 1, v{vG}
    v_lshlrev_b32 v{t1}, 5, v{t1}
    v_add_u32 v{t2}, v{t0}, v{t1}
    v_sub_u32 v{t3}, v{t0}, v{t1}
    s_cmp_eq_u32 s{sNH}, 0
    s_cselect_b64 s[{sMSK}:{sMSK+1}], -1, 0
    v_cndmask_b32 v{vW[0][0]}, v{t3}, v{t2}, s[{sMSK}:{sMSK+1}]
    v_cndmask_b32 v{vW[0][1]}, v{t2}, v{t3}, s[{sMSK}:{sMSK+1}]
    """)
    for k in range(1, NSLOT):
        s += L(f"""
        v_add_u32 v{vA[k]}, {k*SLOT}, v{vA[0]}
        v_add_u32 v{vW[k][0]}, {k*SLOT}, v{vW[0][0]}
        v_add_u32 v{vW[k][1]}, {k*SLOT}, v{vW[0][1]}
        """)
    s += L(f"""
    s_lshl_b32 s{sT0}, s{sMT}, 9
    s_lshl_b32 s{sT1}, s{sMH}, 8
    s_add_u32 s{sT0}, s{sT0}, s{sT1}
    s_add_u32 s{sT0}, s{sT0}, {G_OFF + 8192:#x}
    v_lshlrev_b32 v{t0}, 2, v{vI16}
    """)
    s += [I(f"buffer_load_dword v{vOM[q]}, v{t0}, s[{SWS}:{SWS+3}], s{sT0} offen offset:{q*64}") for q in range(4)]
    return s

def reads(st):
    b = SET[st % 2]; k = st % NSLOT
    a = lambda q: rd128(b + 4 * q, vA[k], q * 2048)
    w = lambda j: [rdtr(b + 16 + 4 * j, vW[k][j & 1], j * 32), rdtr(b + 16 + 4 * j + 2, vW[k][j & 1], j * 32 + 5120)]
    return w(0) + [a(0)] + w(1) + w(2) + w(3) + w(4) + [a(1), a(2), a(3)]

def mfmas(st):
    b = SET[st % 2]
    return [mf(acc(j, q), b + 16 + 4 * j, b + 4 * q, 0 if st == 0 else None) for q in range(4) for j in range(5)]

BARPOS = 2
def mainloop(kp):
    s = []
    for st in range(NST):
        f = []
        w = [waitvm(f"d{st+1}", lgkm=True)] if st + 1 < NST else [I("s_waitcnt lgkmcnt(0)")]
        f.append((BARPOS, w + [I("s_barrier")]))
        if st + 1 < NST: f += spread(reads(st + 1), BARPOS, 18)
        if st + NSLOT < NST: f += spread(st_dma(kp, st + NSLOT), BARPOS + 1, 17)
        if st == 7 or st == 6:
            for k in range(20):
                q, j = divmod(k, 5)
                ops = [I(f"v_mul_f32 v{acc(j,q)+r}, v{acc(j,q)+r}, v{vOM[q]}") for r in range(4)]
                if st == 6 and k < 3: f.append((17 + k, ops))
                if st == 7 and k >= 3: f.append((k - 3, ops))
        s += weave(mfmas(st), f)
    return s

SENT = 0xffffffff
def epilogue(kp):
    t0, t1, t2, t3 = vT[0:4]
    s = L(f"""
    s_mul_i32 s{sT0}, s{sW}, 10240
    v_add_u32 v{t0}, s{sT0}, v{vD}
    s_xor_b32 s{sT1}, s{sW}, 4
    s_mul_i32 s{sT1}, s{sT1}, 10240
    v_add_u32 v{t1}, s{sT1}, v{vD}
    s_lshl_b32 s{sPB}, s{sMT}, 2
    s_add_u32 s{sPB}, s{sPB}, s{sNT}
    s_mul_i32 s{sPB}, s{sPB}, {4*PART_WG}
    s_and_b32 s{sT0}, s{sW}, 3
    s_mul_i32 s{sT0}, s{sT0}, 3072
    s_add_u32 s{sPB}, s{sPB}, s{sT0}
    s_add_u32 s{sPB}, s{sPB}, {PART_OFF:#x}
    s_mov_b32 s{sMSK}, 0xfffffffe
    s_nop 1
    """)
    snd = [2 * (1 - kp), 2 * (1 - kp) + 1]; own = [2 * kp, 2 * kp + 1]
    k = 0
    for q in snd:
        for j in range(5):
            s.append(I(f"ds_write_b128 v{t0}, v[{acc(j,q)}:{acc(j,q)+3}] offset:{k*1024}")); k += 1
    s += L("s_waitcnt lgkmcnt(0)\ns_barrier")
    s += [rd128(X + 4 * k, t1, k * 1024) for k in range(10)]
    k = 0
    for q in own:
        for j in range(5):
            s += [I(f"v_add_f32 v{acc(j,q)+r}, v{acc(j,q)+r}, v{X+4*k+r}") for r in range(4)]; k += 1
    A = s
    sends = []
    for q in own:
        y = X if q == own[0] else X + 12
        b = L(f"""
        s_sub_u32 s{sT0}, s{sC}, {q+1}
        s_and_b32 s{sT0}, s{sT0}, 3
        s_mul_i32 s{sT0}, s{sT0}, {4*3072}
        s_add_u32 s{sT0}, s{sT0}, s{sPB}
        s_add_u32 s{sT0}, s{sT0}, {q*PART_WG}
        """)
        b += pack2(y, acc(0, q), acc(1, q)) + pack2(y + 4, acc(2, q), acc(3, q))
        b += [I(f"v_min_u32 v{y+r}, s{sMSK}, v{y+r}") for r in range(8)]
        b += [I(f"v_min_u32 v{y+8+r}, s{sMSK}, v{acc(4,q)+r}") for r in range(4)]
        b += [I(f"buffer_store_dwordx4 v[{y+4*c}:{y+4*c+3}], v{vD}, s[{SWS}:{SWS+3}], s{sT0} offen offset:{c*1024} sc1") for c in range(3)]
        sends.append((q, b))
    mv = [I(f"v_mov_b32 v{acc(j,own[0])+r}, v{acc(j,own[1])+r}") for j in range(5) for r in range(4)]
    R = 32
    pre = L(f"""
    s_mul_i32 s{sT0}, s{sC}, {PART_WG}
    s_add_u32 s{sPB}, s{sPB}, s{sT0}
    s_add_u32 s{sT1}, s{sPB}, {4*3072}
    s_add_u32 s{sT2}, s{sPB}, {8*3072}
    s_mov_b32 s{sCNT}, 0
    """)
    pre += L(f"""
    s_lshl_b32 s{sT0}, s{sMT}, 7
    s_lshl_b32 s{so2}, s{sMH}, 6
    s_add_u32 s{sT0}, s{sT0}, s{so2}
    s_lshl_b32 s{so2}, s{sC}, 4
    s_add_u32 s{sT0}, s{sT0}, s{so2}
    s_mul_i32 s{sT0}, s{sT0}, 1280
    s_mul_i32 s{so2}, s{sNT}, 320
    s_add_u32 s{sT0}, s{sT0}, s{so2}
    s_mul_i32 s{so2}, s{sNH}, 160
    s_add_u32 s{so2}, s{sT0}, s{so2}
    v_mul_u32_u24 v{t0}, 1280, v{vI16}
    v_and_b32 v{t1}, 1, v{vG}
    v_lshlrev_b32 v{t1}, 5, v{t1}
    v_lshrrev_b32 v{t2}, 1, v{vG}
    v_lshl_add_u32 v{t1}, v{t2}, 4, v{t1}
    v_add_u32 v{t1}, v{t0}, v{t1}
    v_lshl_add_u32 v{t0}, v{vG}, 3, v{t0}
    """)
    poll = []
    for si, so in enumerate((sPB, sT1, sT2)):
        poll += [I(f"buffer_load_dwordx4 v[{R+12*si+4*c}:{R+12*si+4*c+3}], v{vD}, s[{SWS}:{SWS+3}], s{so} offen offset:{c*1024} sc1") for c in range(3)]
    poll += L(f"s_add_u32 s{sCNT}, s{sCNT}, 1\ns_waitcnt vmcnt(0)")
    poll += [I(f"v_max3_u32 v{t2}, v{R}, v{R+1}, v{R+2}")] + [I(f"v_max3_u32 v{t2}, v{t2}, v{R+k}, v{R+k+1}") for k in range(3, 35, 2)] + [I(f"v_max_u32 v{t2}, v{t2}, v{R+35}")]
    poll += L(f"""
    v_cmp_eq_u32 vcc, -1, v{t2}
    s_cmp_ge_u32 s{sCNT}, 0x20000
    """)
    o = own[0]
    fin = L(f"s_mov_b32 s{sMSK}, 0xffff0000")
    for si in range(3):
        for c in range(2):
            for h in range(4):
                r = R + 12 * si + 4 * c + h
                d = acc(2 * c + (h >> 1), o) + 2 * (h & 1)
                fin += L(f"""
                v_lshlrev_b32 v{t2}, 16, v{r}
                v_and_b32 v{t3}, s{sMSK}, v{r}
                v_add_f32 v{d}, v{d}, v{t2}
                v_add_f32 v{d+1}, v{d+1}, v{t3}
                """)
        fin += [I(f"v_add_f32 v{acc(4,o)+r}, v{acc(4,o)+r}, v{R+12*si+8+r}") for r in range(4)]
    y = X
    fin += pack2(y, acc(0, o), acc(1, o)) + pack2(y + 4, acc(2, o), acc(3, o)) + [cvtpk(y + 8, acc(4, o), acc(4, o) + 1), cvtpk(y + 9, acc(4, o) + 2, acc(4, o) + 3)]
    fin += L(f"""
    s_nop 1
    v_permlane16_swap_b32 v{y}, v{y+2}
    v_permlane16_swap_b32 v{y+1}, v{y+3}
    v_permlane16_swap_b32 v{y+4}, v{y+6}
    v_permlane16_swap_b32 v{y+5}, v{y+7}
    s_nop 1
    buffer_store_dwordx4 v[{y}:{y+3}], v{t1}, s[{SOUT}:{SOUT+3}], s{so2} offen
    buffer_store_dwordx4 v[{y+4}:{y+7}], v{t1}, s[{SOUT}:{SOUT+3}], s{so2} offen offset:64
    buffer_store_dwordx2 v[{y+8}:{y+9}], v{t0}, s[{SOUT}:{SOUT+3}], s{so2} offen offset:128
    """)
    return A, sends, mv, pre, poll, fin

def emit():
    s0 = setup()
    out = s0 + L(f"s_cmp_ge_u32 s{sW}, 4\ns_cbranch_scc1 P3_K1")
    for kp in range(2):
        sd = setup_dma(kp)
        A, sends, mv, pre, poll, fin = epilogue(kp)
        lin = resolve_vm(sum((sum(st_dma(kp, st), []) for st in range(NSLOT)), []) + setup2() + [waitvm("d0"), I("s_barrier")] + reads(0) + mainloop(kp) + A)
        lin, q = add_lgkm(lin, slack=1)
        assert not q
        verify(s0 + sd + lin + sends[0][1] + sends[1][1] + mv + pre + poll + poll + fin, f"p3 kp{kp}")
        verify(s0 + sd + lin + sends[1][1] + pre + poll + fin, f"p3 kp{kp} b")
        verify(s0 + sd + lin + sends[0][1] + mv + pre + poll + fin, f"p3 kp{kp} c")
        c = sd + lin
        for q, b in sends:
            c += L(f"s_cmp_eq_u32 s{sC}, {q}\ns_cbranch_scc1 P3_S{q}") + b + L(f"P3_S{q}:")
        c += L(f"""
        s_lshr_b32 s{sT0}, s{sC}, 1
        s_cmp_lg_u32 s{sT0}, {kp}
        s_cbranch_scc1 P3_END
        s_bitcmp0_b32 s{sC}, 0
        s_cbranch_scc1 P3_R{kp}
        """) + mv + L(f"P3_R{kp}:") + pre + L(f"P3_POLL{kp}:") + poll + L(f"""
        s_cbranch_scc1 P3_GO{kp}
        s_cbranch_vccnz P3_POLL{kp}
        P3_GO{kp}:
        """) + fin
        if kp == 0: out += c + L("s_branch P3_END\nP3_K1:")
        else: out += c
    out += L("P3_END:")
    return out

def prefill(vD, vS, SWS, sT, sT2, sW):
    s = L(f"""
    s_mul_i32 s{sT}, s2, {PART_WG}
    s_mul_i32 s{sT2}, s{sW}, 4608
    s_add_u32 s{sT}, s{sT}, s{sT2}
    s_add_u32 s{sT}, s{sT}, {PART_OFF:#x}
    s_add_u32 s{sT2}, s{sT}, 1024
    """) + [I(f"v_mov_b32 v{vS+r}, -1") for r in range(4)]
    s += [I(f"buffer_store_dwordx4 v[{vS}:{vS+3}], v{vD}, s[{SWS}:{SWS+3}], s{sT} offen sc1")]
    s += [I(f"buffer_store_dwordx4 v[{vS}:{vS+3}], v{vD}, s[{SWS}:{SWS+3}], s{sT2} offen offset:{c*1024} sc1") for c in range(4)]
    return s

if __name__ == "__main__":
    s = emit()
    print(len(s), "instructions")
```

```python
import sys
from common import *
import p1
HDR = open("gated_mix__compressed_kv_cla__geglu_ffn__prompt.s.ref").read().split("; Override")[0]
def main(out, which):
    launches = []; body = ""
    if "p1" in which:
        launches.append("; @launch kernel=p1_kernel grid=(256,1,1) block=(512,1,1) lds=163840")
        body += kernel("p1_kernel", p1.emit())
    if "p2" in which:
        import p2
        launches.append("; @launch kernel=p2_kernel grid=(256,1,1) block=(512,1,1) lds=163840")
        body += kernel("p2_kernel", p2.emit())
    if "p3" in which:
        import p3
        launches.append(f"; @launch kernel=p3_kernel grid=(256,1,1) block=(512,1,1) lds={p3.LDS}")
        body += kernel("p3_kernel", p3.emit())
    open(out, "w").write(HDR + "\n".join(launches) + '\n.amdgcn_target "amdgcn-amd-amdhsa--gfx950"\n' + body)
main(sys.argv[1], sys.argv[2:])
```

```python
from ag import *

import os
OPT = set(os.environ.get("OPT", "").split(","))
WS_BASE = (176 << 20) if "hi" in OPT else 0
KF_OFF = WS_BASE
VF_OFF = 16 << 20
AF_OFF = WS_BASE + (32 << 20)
G_OFF = WS_BASE + (56 << 20)
FLAG_OFF = WS_BASE + (57 << 20)
PART_OFF = WS_BASE + (64 << 20)
KVSC = "" if "kvplain" in OPT else " sc1"
WS_BYTES = 0x10000000
NSTG = 91
AF_MT = NSTG * 16384

A_X, A_C, A_WQ, A_WUK, A_WUV, A_WO, A_BX, A_WG, A_WU, A_WD, A_GW, A_OUT, A_DBG, A_WS = [8 * i for i in range(14)]
SZ_X, SZ_C, SZ_WQ, SZ_WUK, SZ_WO, SZ_WG, SZ_WD, SZ_GW, SZ_OUT = 2621440, 2097152, 5242880, 4194304, 5242880, 2211840, 2211840, 1280, 2621440

def srd(d, p, size):
    return L(f"""
    s_mov_b32 s{d}, s{p}
    s_and_b32 s{d+1}, s{p+1}, 0xffff
    s_mov_b32 s{d+2}, {size:#x}
    s_mov_b32 s{d+3}, 0x20000
    """)

def mf(d, a, b, c=None):
    cs = "0" if c == 0 else (f"v[{d}:{d+3}]" if c is None else f"v[{c}:{c+3}]")
    return I(f"v_mfma_f32_16x16x32_bf16 v[{d}:{d+3}], v[{a}:{a+3}], v[{b}:{b+3}], {cs}")

def rd128(d, a, off):
    assert 0 <= off < 65536, off
    return I(f"ds_read_b128 v[{d}:{d+3}], v{a} offset:{off}")

def rdtr(d, a, off):
    assert 0 <= off < 65536, off
    return I(f"ds_read_b64_tr_b16 v[{d}:{d+1}], v{a} offset:{off}")

def dma(v, s, soff, off, tag=None, extra=""):
    i = I(f"buffer_load_dwordx4 v{v}, s[{s}:{s+3}], s{soff} offen offset:{off}{extra} lds" + (f" ; @{tag}" if tag else ""))
    return i

def waitvm(tag, lgkm=False):
    return I(f"s_waitcnt vmcnt(@{tag})" + (" lgkmcnt(0)" if lgkm else ""))

import re as _re
_lab = [0]
def guarded(variant, body):
    _lab[0] += 1
    return [I(f"s_cbranch_vcc{'z' if variant else 'nz'} VR{_lab[0]}")] + body + [I(f"VR{_lab[0]}:")]

def variant(seq, v):
    out = []; skip = None
    for i in seq:
        if skip:
            if i.t == skip + ":": skip = None
            continue
        if i.kind == "br" and " VR" in i.t:
            taken = (i.op == "s_cbranch_vccz") == (v == 0)
            if taken: skip = i.t.split()[1]
        out.append(i)
    return out

def resolve_vm(seq):
    out = []
    vm = [[], []]
    only = None
    for i in seq:
        if i.kind == "br" and " VR" in i.t:
            only = (1 if i.op == "s_cbranch_vccz" else 0, i.t.split()[1])
        elif only and i.t == only[1] + ":":
            only = None
        if i.kind == "wait" and "@" in i.t.split(";")[0]:
            assert only is None
            tag = _re.search(r"vmcnt\(@(\w+)\)", i.t).group(1)
            ns = []
            for v in range(2):
                idx = [k for k, t in enumerate(vm[v]) if t == tag]
                assert idx, f"no vmem op tagged {tag}"
                ns.append(len(vm[v]) - 1 - idx[-1])
            assert max(ns) <= 63, (tag, ns)
            out.append(I(i.t.replace(f"@{tag}", str(max(ns)))))
            if ns[0] != ns[1]:
                out += guarded(0 if ns[0] < ns[1] else 1, [I(f"s_waitcnt vmcnt({min(ns)})")])
            continue
        elif i.kind in ("dma", "vld", "vst", "vat"):
            m = _re.search(r";\s*@(\w+)", i.t)
            if m and m.group(1) == "opt":
                out.append(i); continue
            for v in range(2):
                if only is None or only[0] == v: vm[v].append(m.group(1) if m else None)
        out.append(i)
    return out

def cvtpk(d, a, b):
    return I(f"v_cvt_pk_bf16_f32 v{d}, v{a}, v{b}")

def pack2(dst, x, y):
    return [cvtpk(dst, x, x + 1), cvtpk(dst + 1, x + 2, x + 3), cvtpk(dst + 2, y, y + 1), cvtpk(dst + 3, y + 2, y + 3)]

def verify(path, name):
    errs = []
    for v in range(2):
        p = variant(path, v)
        errs += check_hazards(p, name) + check_waits(p, name)
        if len(p) == len(path): break
    for e in errs[:40]: print(e)
    assert not errs, f"{len(errs)} problems in {name}"

DIAG_OFF = 128 << 20
def stamp(k, dyn=None):
    return I(f"; @@STAMP {k}" + (f" {dyn}" if dyn is not None else ""))

def diag_expand(seq, kidx, on):
    out = []
    for i in seq:
        if i.t.startswith("; @@STAMP"):
            if on:
                k = int(i.t.split()[2])
                import os
                sel = os.environ.get(f"STAMPS{kidx}")
                if sel and str(k) not in sel.split(","): continue
                if len(i.t.split()) > 3:
                    d = int(i.t.split()[3])
                    out += L(f"""
                    s_lshl_b32 m0, s{d}, 3
                    s_add_u32 m0, m0, {2*k}
                    s_memtime s[100:101]
                    s_waitcnt lgkmcnt(0)
                    v_writelane_b32 v0, s100, m0
                    s_add_u32 m0, m0, 1
                    s_memrealtime s[100:101]
                    s_waitcnt lgkmcnt(0)
                    v_writelane_b32 v0, s100, m0
                    """)
                    continue
                out += L(f"""
                s_memtime s[100:101]
                s_waitcnt lgkmcnt(0)
                v_writelane_b32 v0, s100, {2*k}
                s_memrealtime s[100:101]
                s_waitcnt lgkmcnt(0)
                v_writelane_b32 v0, s100, {2*k+1}
                """)
        else:
            out.append(i)
    if on:
        out += L(f"""
        s_cmp_ge_u32 s2, 256
        s_cbranch_scc1 DIAG_END{kidx}
        s_memtime s[100:101]
        s_waitcnt lgkmcnt(0)
        v_writelane_b32 v0, s100, 60
        s_memrealtime s[100:101]
        s_waitcnt lgkmcnt(0)
        v_writelane_b32 v0, s100, 61
        s_waitcnt vmcnt(0)
        s_memtime s[100:101]
        s_waitcnt lgkmcnt(0)
        v_writelane_b32 v0, s100, 62
        s_memrealtime s[100:101]
        s_waitcnt lgkmcnt(0)
        v_writelane_b32 v0, s100, 63
        s_load_dwordx2 s[8:9], s[0:1], {A_WS}
        s_waitcnt lgkmcnt(0)
        s_and_b32 s9, s9, 0xffff
        s_mov_b32 s10, {WS_BYTES:#x}
        s_mov_b32 s11, 0x20000
        s_lshl_b32 s12, s2, 3
        s_add_u32 s12, s12, s3
        s_add_u32 s12, s12, {kidx*2048}
        s_lshl_b32 s12, s12, 8
        s_add_u32 s12, s12, {DIAG_OFF:#x}
        v_mbcnt_lo_u32_b32 v1, -1, 0
        v_mbcnt_hi_u32_b32 v1, -1, v1
        v_lshlrev_b32 v1, 2, v1
        buffer_store_dword v0, v1, s[8:11], s12 offen
        DIAG_END{kidx}:
        """)
    return out
```

```python
from common import *
import struct
def f2h(x):
    return "0x%08x" % struct.unpack("<I", struct.pack("<f", x))[0]

sW, sXCD, sSLOT, sH, sPI = 3, 4, 5, 6, 7
SWS, SDBG, SWD, SWO = 8, 12, 16, 20
sT0, sT1, sT2, sT3 = 24, 25, 26, 27
sP = 28
sFLAG = 29
sPC = 30
soC, soW, soX, soG = 32, 33, 34, 35
mA, mWk = 36, 37
sFB, sST, sVALID = 39, 40, 31
sOUTP = 42
sGI = 41
sNL, sNH = 38, 59
sCLK = 44
SX, SC, SW1, SW2, SGW = 60, 64, 68, 72, 76
P = 80
vLane, vI16, vG = 1, 2, 3
vMAP = 1
vDC = [5, 6, 7, 30]
vDW = [8, 9, 10, 11]
vRA = [[12, 13], [14, 15]]
vRW = [[16, 17, 18, 19], [20, 21, 22, 23]]
vDX = [24, 25, 26, 27]
vPOLL, vTMP = 28, 29
vD = 4
vT = 31
SET = [32, 80]
ACC = 128
PART_WG = 36864
QS = 131072
PFV = 92

def setup():
    s = L(f"""
    s_cmp_ge_u32 s2, 256
    s_cbranch_scc1 K_END
    s_load_dwordx4 s[{P}:{P+3}], s[0:1], {A_X}
    s_load_dwordx4 s[{P+4}:{P+7}], s[0:1], {A_WUK}
    s_load_dwordx2 s[{P+8}:{P+9}], s[0:1], {A_WS}
    s_load_dwordx2 s[{P+10}:{P+11}], s[0:1], {A_WQ}
    s_load_dwordx4 s[{P+12}:{P+15}], s[0:1], {A_WG}
    s_load_dwordx4 s[{P+16}:{P+19}], s[0:1], {A_WD}
    s_load_dwordx2 s[{SDBG}:{SDBG+1}], s[0:1], {A_DBG}
    s_load_dwordx2 s[{SWO}:{SWO+1}], s[0:1], {A_WO}
    s_load_dwordx2 s[{sOUTP}:{sOUTP+1}], s[0:1], {A_OUT}
    s_memrealtime s[{sCLK}:{sCLK+1}]
    v_lshrrev_b32 v{vT}, 6, v0
    v_and_b32 v{vLane}, 63, v0
    v_readfirstlane_b32 s{sW}, v{vT}
    v_and_b32 v{vI16}, 15, v0
    v_lshrrev_b32 v{vG}, 4, v{vLane}
    v_lshlrev_b32 v{vD}, 4, v{vLane}
    ; @@STAMP 0
    s_and_b32 s{sXCD}, s2, 7
    s_lshr_b32 s{sSLOT}, s2, 3
    s_and_b32 s{sT0}, s{sSLOT}, 3
    s_lshl_b32 s{sH}, s{sXCD}, 2
    s_add_u32 s{sH}, s{sH}, s{sT0}
    s_lshr_b32 s{sPI}, s{sSLOT}, 2
    s_lshr_b32 s{sP}, s{sW}, 2
    s_lshl_b32 s{mA}, s{sW}, 12
    s_add_u32 s{mWk}, s{mA}, 32768
    """)
    t0, t1, t2, t3 = 32, 33, 34, 35
    s += L(f"""
    v_lshrrev_b32 v{t0}, 3, v{vLane}
    v_and_b32 v{t1}, 7, v{vLane}
    """)
    for n in range(4):
        s += L(f"""
        v_add_u32 v{t2}, {4*n}, v{vG}
        v_and_b32 v{t2}, 7, v{t2}
        v_xor_b32 v{t2}, v{t2}, v{t1}
        v_lshlrev_b32 v{t2}, 4, v{t2}
        v_add_u32 v{t3}, {8*n}, v{t0}
        v_lshl_add_u32 v{vDC[n]}, v{t3}, 10, v{t2}
        v_subrev_u32 v{vDC[n]}, {n*1024}, v{vDC[n]}
        v_mul_u32_u24 v{t3}, 1280, v{t3}
        v_add_u32 v{vDX[n]}, v{t3}, v{t2}
        v_subrev_u32 v{vDX[n]}, {n*1024}, v{vDX[n]}
        """)
    for n in range(4):
        s += L(f"""
        v_lshrrev_b32 v{t2}, 1, v{vI16}
        v_xor_b32 v{t2}, v{t2}, v{vG}
        v_xor_b32 v{t2}, {((n>>1)&1)<<2}, v{t2}
        v_lshlrev_b32 v{t2}, 5, v{t2}
        v_and_b32 v{t3}, 1, v{vLane}
        v_lshl_add_u32 v{t2}, v{t3}, 4, v{t2}
        v_add_u32 v{t3}, {4*n}, v{vG}
        v_lshl_add_u32 v{vDW[n]}, v{t3}, 13, v{t2}
        v_subrev_u32 v{vDW[n]}, {n*1024}, v{vDW[n]}
        """)
    s += L(f"""
    s_lshl_b32 s{sT0}, s{sPI}, 8
    s_lshl_b32 s{sT1}, s{sW}, 5
    s_add_u32 s{sT0}, s{sT0}, s{sT1}
    s_lshl_b32 s{soC}, s{sT0}, 10
    s_and_b32 s{sT0}, s{sW}, 3
    s_lshl_b32 s{soW}, s{sT0}, 17
    s_lshl_b32 s{sT1}, s{sH}, 8
    s_add_u32 s{soW}, s{soW}, s{sT1}
    s_waitcnt lgkmcnt(0)
    """)
    s += srd(SC, P + 2, SZ_C)
    s += L(f"""
    s_cmp_lt_u32 s{sW}, 4
    s_cselect_b32 s{P+4}, s{P+4}, s{P+6}
    s_cselect_b32 s{P+5}, s{P+5}, s{P+7}
    """) + srd(SW1, P + 4, SZ_WUK)
    return s

def setup_late():
    s = srd(SX, P, SZ_X) + srd(SWS, P + 8, WS_BYTES) + srd(SGW, P + 18, SZ_GW) + srd(SWD, P + 16, SZ_WD)
    s += L(f"""
    s_and_b32 s{SDBG+1}, s{SDBG+1}, 0xffff
    s_mov_b32 s{SDBG+2}, 256
    s_mov_b32 s{SDBG+3}, 0x20000
    s_and_b32 s{SWO+1}, s{SWO+1}, 0xffff
    s_mov_b32 s{SWO+2}, {SZ_WO:#x}
    s_mov_b32 s{SWO+3}, 0x20000
    s_lshl_b32 s{sFLAG}, s{sH}, 3
    s_add_u32 s{sFLAG}, s{sFLAG}, s{sPI}
    s_lshl_b32 s{sFLAG}, s{sFLAG}, 8
    s_add_u32 s{sFLAG}, s{sFLAG}, {FLAG_OFF:#x}
    s_and_b32 s{sT0}, s{sSLOT}, 3
    s_lshl_b32 s{sFB}, s{sT0}, 3
    s_add_u32 s{sFB}, s{sFB}, s{sXCD}
    s_mul_i32 s{sT1}, s{sXCD}, 3
    s_sub_u32 s{sT2}, s{sPI}, s{sT1}
    s_and_b32 s{sT2}, s{sT2}, 7
    s_add_u32 s{sT1}, s{sT1}, s{sT2}
    s_lshr_b32 s{sT1}, s{sT1}, 3
    s_add_u32 s{sT1}, s{sT1}, 24
    s_mul_i32 s{sGI}, s{sXCD}, 5
    s_add_u32 s{sGI}, s{sGI}, s{sT2}
    s_sub_u32 s{sGI}, s{sGI}, 3
    s_cmp_lt_u32 s{sT2}, 3
    s_cselect_b32 s{sVALID}, 1, 0
    s_cmp_lt_u32 s{sT0}, 3
    s_cselect_b32 s{sVALID}, 1, s{sVALID}
    s_cselect_b32 s{sFB}, s{sFB}, s{sT1}
    s_cmp_eq_u32 s{sPI}, 0
    s_cselect_b64 vcc, -1, 0
    """)
    s += L(f"""
    s_or_b32 s{sT0}, s2, s{sW}
    s_cmp_lg_u32 s{sT0}, 0
    s_cbranch_scc1 NOTAG
    s_lshl_b64 s[{sCLK}:{sCLK+1}], s[{sCLK}:{sCLK+1}], 3
    s_bitset1_b32 s{sCLK+1}, 31
    v_mov_b32 v{vPOLL}, s{sCLK}
    v_mov_b32 v{vTMP}, s{sCLK+1}
    s_mov_b64 exec, 1
    buffer_store_dwordx2 v[{vPOLL}:{vTMP}], off, s[{SDBG}:{SDBG+3}], 0 sc1 ; @opt
    s_mov_b64 exec, -1
    NOTAG:
    """)
    s += L(f"""
    s_cmp_lt_u32 s{sW}, 2
    s_cselect_b32 s{P+12}, s{P+12}, s{P+14}
    s_cselect_b32 s{P+13}, s{P+13}, s{P+15}
    s_cmp_lt_u32 s{sW}, 4
    s_cselect_b32 s{SW2}, s{P+12}, s{P+10}
    s_cselect_b32 s{SW2+1}, s{P+13}, s{P+11}
    s_and_b32 s{SW2+1}, s{SW2+1}, 0xffff
    s_mov_b32 s{sT0}, {SZ_WG:#x}
    s_cselect_b32 s{SW2+2}, s{sT0}, {SZ_WQ:#x}
    s_mov_b32 s{SW2+3}, 0x20000
    """)
    s = s[:-4] + L(f"""
    s_mov_b32 s{sT0}, {SZ_WG:#x}
    s_cselect_b32 s{SW2+2}, s{sT0}, {SZ_WQ:#x}
    s_and_b32 s{SW2+1}, s{SW2+1}, 0xffff
    s_mov_b32 s{SW2+3}, 0x20000
    """)
    s += L(f"""
    s_sub_u32 s{sT0}, 15, s{sPI}
    s_cmp_lt_u32 s{sW}, 4
    s_cselect_b32 s{sT1}, s{sT0}, s{sPI}
    s_lshl_b32 s{sT1}, s{sT1}, 7
    s_and_b32 s{sT2}, s{sW}, 3
    s_lshl_b32 s{sT2}, s{sT2}, 5
    s_add_u32 s{sT1}, s{sT1}, s{sT2}
    s_mul_i32 s{soX}, s{sT1}, 1280
    """)
    s += L(f"""
    s_and_b32 s{sT0}, s{sW}, 1
    s_mul_i32 s{sT0}, s{sT0}, {32*3456}
    s_lshl_b32 s{sT1}, s{sFB}, 7
    s_add_u32 s{sT0}, s{sT0}, s{sT1}
    s_and_b32 s{sT1}, s{sW}, 3
    s_lshl_b32 s{sT1}, s{sT1}, 17
    s_lshl_b32 s{sT2}, s{sH}, 8
    s_add_u32 s{sT1}, s{sT1}, s{sT2}
    s_cmp_lt_u32 s{sW}, 4
    s_cselect_b32 s{soG}, s{sT0}, s{sT1}
    """)
    return s

def prefill(k):
    r = PFV
    s = []
    if k == 0:
        s += L(f"""
        s_mul_i32 s{sST}, s2, {PART_WG}
        s_mul_i32 s{sT1}, s{sW}, 4608
        s_add_u32 s{sST}, s{sST}, s{sT1}
        s_add_u32 s{sST}, s{sST}, {PART_OFF:#x}
        """)
    s += [I(f"v_mov_b32 v{r+j}, -1") for j in range(4)]
    s += [I(f"buffer_store_dwordx4 v[{r}:{r+3}], v{vD}, s[{SWS}:{SWS+3}], s{sST} offen sc1"), I(f"s_add_u32 s{sST}, s{sST}, 1024")]
    return s

def pf_kv():
    a, b = vTMP, vT
    s = L(f"""
    s_lshl_b32 s{sT0}, s{sSLOT}, 16
    s_lshl_b32 s{sT1}, s{sW}, 13
    s_add_u32 s{sT0}, s{sT0}, s{sT1}
    v_lshlrev_b32 v{a}, 7, v{vLane}
    buffer_load_dword v{vPOLL}, v{a}, s[{SC}:{SC+3}], s{sT0} offen
    """)
    if "pf64" in OPT: s += L(f"buffer_load_dword v{vPOLL}, v{a}, s[{SC}:{SC+3}], s{sT0} offen offset:64")
    s += L(f"""
    s_lshl_b32 s{sT0}, s{sSLOT}, 17
    s_and_b32 s{sT1}, s{sW}, 3
    s_lshl_b32 s{sT1}, s{sT1}, 15
    s_add_u32 s{sT0}, s{sT0}, s{sT1}
    s_lshl_b32 s{sT1}, s{sXCD}, 10
    s_add_u32 s{sT0}, s{sT0}, s{sT1}
    v_lshlrev_b32 v{a}, 13, v{vG}
    v_lshl_add_u32 v{a}, v{vI16}, 6, v{a}
    buffer_load_dword v{vPOLL}, v{a}, s[{SW1}:{SW1+3}], s{sT0} offen
    """)
    return s

def pf_qg(kind, hf):
    a, b = vTMP, vT
    s = L(f"""
    s_lshl_b32 s{sT0}, s{sSLOT}, 6
    s_lshl_b32 s{sT1}, s{sW}, 3
    s_add_u32 s{sT0}, s{sT0}, s{sT1}
    s_mul_i32 s{sT0}, s{sT0}, 1280
    v_lshrrev_b32 v{a}, 3, v{vLane}
    v_mul_u32_u24 v{a}, 1280, v{a}
    v_and_b32 v{b}, 7, v{vLane}
    v_min_u32 v{b}, 4, v{b}
    v_lshl_add_u32 v{a}, v{b}, 7, v{a}
    buffer_load_dword v{vPOLL}, v{a}, s[{SX}:{SX+3}], s{sT0} offen offset:{640*hf}
    """)
    if "pf64" in OPT: s += L(f"buffer_load_dword v{vPOLL}, v{a}, s[{SX}:{SX+3}], s{sT0} offen offset:{640*hf+64}")
    if kind == 0:
        s += L(f"""
        s_mul_i32 s{sT0}, s{sPI}, 40
        s_and_b32 s{sT1}, s{sW}, 1
        s_mul_i32 s{sT1}, s{sT1}, 20
        s_add_u32 s{sT0}, s{sT0}, s{sT1}
        s_add_u32 s{sT0}, s{sT0}, {320*hf}
        s_mul_i32 s{sT0}, s{sT0}, 3456
        s_lshl_b32 s{sT1}, s{sFB}, 7
        s_add_u32 s{sT0}, s{sT0}, s{sT1}
        v_min_u32 v{b}, 39, v{vLane}
        v_lshrrev_b32 v{a}, 1, v{b}
        v_mul_u32_u24 v{a}, 3456, v{a}
        v_and_b32 v{b}, 1, v{b}
        v_lshl_add_u32 v{a}, v{b}, 6, v{a}
        buffer_load_dword v{vPOLL}, v{a}, s[{SW2}:{SW2+3}], s{sT0} offen
        """)
    elif kind == 1:
        s += L(f"""
        s_mul_i32 s{sT0}, s{sPI}, 40
        s_and_b32 s{sT1}, s{sW}, 3
        s_mul_i32 s{sT1}, s{sT1}, 10
        s_add_u32 s{sT0}, s{sT0}, s{sT1}
        s_add_u32 s{sT0}, s{sT0}, {320*hf}
        s_lshl_b32 s{sT0}, s{sT0}, 13
        s_lshl_b32 s{sT1}, s{sH}, 8
        s_add_u32 s{sT0}, s{sT0}, s{sT1}
        v_min_u32 v{b}, 39, v{vLane}
        v_lshrrev_b32 v{a}, 2, v{b}
        v_lshlrev_b32 v{a}, 13, v{a}
        v_and_b32 v{b}, 3, v{b}
        v_lshl_add_u32 v{a}, v{b}, 6, v{a}
        buffer_load_dword v{vPOLL}, v{a}, s[{SW2}:{SW2+3}], s{sT0} offen
        """)
    return s

def dma4(m_expr, v, R, so, tag, inc, extra=""):
    g = [[I(m_expr), I("s_nop 0"), dma(v[0], R, so, 0, tag, extra)]] + [[dma(v[n], R, so, n * 1024, tag, extra)] for n in range(1, 4)]
    if inc: g[-1].append(I(f"s_add_u32 s{so}, s{so}, {inc}"))
    return g

def kv_dma(stage):
    buf = (stage % 2) * 65536
    tag = f"kv{stage}"
    return dma4(f"s_add_u32 m0, s{mA}, {buf}", vDC, SC, soC, tag, 128) + dma4(f"s_add_u32 m0, s{mWk}, {buf}", vDW, SW1, soW, tag, 64 * 8192)

def qg_dma(kind, stage):
    buf = (stage % 2) * 65536
    tag = f"qg{stage}"
    g = dma4(f"s_add_u32 m0, s{mA}, {buf}", vDX, SX, soX, tag, 128)
    if kind != 2:
        g += dma4(f"s_add_u32 m0, s{mWk}, {buf}", vDW, SW2, soG, tag, 64 * (3456 if kind == 0 else 8192))
    return g

def kv_addr():
    t0, t1, t2 = 32, 33, 34
    s = L(f"""
    s_lshr_b32 s{sT0}, s{sW}, 1
    s_and_b32 s{sT0}, s{sT0}, 1
    s_lshl_b32 s{sT0}, s{sT0}, 14
    v_lshrrev_b32 v{t0}, 1, v{vI16}
    v_xor_b32 v{t0}, v{t0}, v{vG}
    v_lshlrev_b32 v{t0}, 4, v{t0}
    v_lshl_add_u32 v{t0}, v{vI16}, 7, v{t0}
    v_add_u32 v{vRA[0][0]}, s{sT0}, v{t0}
    v_xor_b32 v{vRA[0][1]}, 64, v{vRA[0][0]}
    v_add_u32 v{vRA[1][0]}, 0x10000, v{vRA[0][0]}
    v_add_u32 v{vRA[1][1]}, 0x10000, v{vRA[0][1]}
    s_lshl_b32 s{sT0}, s{sP}, 14
    s_add_u32 s{sT0}, s{sT0}, 32768
    s_and_b32 s{sT1}, s{sW}, 1
    s_lshl_b32 s{sT1}, s{sT1}, 2
    v_lshrrev_b32 v{t0}, 2, v{vI16}
    v_and_b32 v{t1}, 1, v{vG}
    v_lshl_add_u32 v{t1}, v{t1}, 2, v{t0}
    v_xor_b32 v{t1}, s{sT1}, v{t1}
    v_lshl_add_u32 v{t0}, v{vG}, 3, v{t0}
    v_lshlrev_b32 v{t0}, 8, v{t0}
    v_and_b32 v{t2}, 3, v{vI16}
    v_lshl_add_u32 v{t0}, v{t2}, 3, v{t0}
    v_add_u32 v{t0}, s{sT0}, v{t0}
    """)
    for j in range(4):
        s += L(f"""
        v_xor_b32 v{t2}, {j}, v{t1}
        v_lshl_add_u32 v{vRW[0][j]}, v{t2}, 5, v{t0}
        v_add_u32 v{vRW[1][j]}, 0x10000, v{vRW[0][j]}
        """)
    return s

def gu_dma_addr():
    a, b = vTMP, vT
    s = []
    for n in range(4):
        s += L(f"""
        v_bfe_u32 v{a}, v{vLane}, 1, 2
        v_and_b32 v{b}, 1, v{vG}
        v_xor_b32 v{a}, v{a}, v{b}
        v_xor_b32 v{a}, {(n&1)<<1}, v{a}
        v_lshlrev_b32 v{a}, 5, v{a}
        v_and_b32 v{b}, 1, v{vLane}
        v_lshl_add_u32 v{a}, v{b}, 4, v{a}
        v_lshrrev_b32 v{b}, 3, v{vLane}
        v_add_u32 v{b}, {8*n}, v{b}
        v_mul_u32_u24 v{b}, 3456, v{b}
        v_add_u32 v{vDW[n]}, v{b}, v{a}
        v_subrev_u32 v{vDW[n]}, {n*1024}, v{vDW[n]}
        """)
    return s

def gu_read_addr(buf):
    a, b = vTMP, vT
    r0, r1 = vRW[buf][0], vRW[buf][1]
    return L(f"""
    s_and_b32 s{sT1}, s{sW}, 1
    s_lshl_b32 s{sT1}, s{sT1}, 1
    v_lshrrev_b32 v{a}, 3, v{vI16}
    v_and_b32 v{b}, 1, v{vG}
    v_lshl_add_u32 v{a}, v{b}, 1, v{a}
    v_xor_b32 v{a}, s{sT1}, v{a}
    v_lshrrev_b32 v{b}, 2, v{vI16}
    v_lshl_add_u32 v{b}, v{vG}, 3, v{b}
    v_lshlrev_b32 v{b}, 7, v{b}
    v_and_b32 v{r1}, 3, v{vI16}
    v_lshl_add_u32 v{b}, v{r1}, 3, v{b}
    v_add_u32 v{b}, {32768 + buf*65536:#x}, v{b}
    v_lshl_add_u32 v{r0}, v{a}, 5, v{b}
    v_xor_b32 v{a}, 1, v{a}
    v_lshl_add_u32 v{r1}, v{a}, 5, v{b}
    """)

def kv_reads(stage, kk, st):
    b = stage % 2
    base = SET[st]
    c = lambda tt: rd128(base + 4 * tt, vRA[b][kk], tt * 2048)
    w = lambda j: [rdtr(base + 32 + 4 * j, vRW[b][j], kk * 8192), rdtr(base + 32 + 4 * j + 2, vRW[b][j], kk * 8192 + 1024)]
    return w(0) + [c(0)] + w(1) + w(2) + w(3) + [c(t) for t in range(1, 8)]

def kv_mfmas(kind, st, first, rev=False):
    base = SET[st]
    out = []
    for tt in (range(7, -1, -1) if rev else range(8)):
        for j in range(4):
            d = ACC + (tt * 4 + j) * 4
            cf, wf = base + 4 * tt, base + 32 + 4 * j
            out.append(mf(d, wf, cf, 0 if first else None) if kind != 1 else mf(d, cf, wf, 0 if first else None))
    return out

WB = [32, 48]; XR = 64
acc2 = lambda t: (80 + 4 * t) if t < 12 else (128 + 4 * (t - 12))
PK = 192
def qg_wreads(kind, stage, kk):
    b = stage % 2; base = WB[kk]
    out = []
    for j in range(4):
        if kind == 0:
            o = (j >> 1) * 8192 + kk * 4096
            out += [rdtr(base + 4 * j, vRW[b][j & 1], o), rdtr(base + 4 * j + 2, vRW[b][j & 1], o + 512)]
        else:
            out += [rdtr(base + 4 * j, vRW[b][j], kk * 8192), rdtr(base + 4 * j + 2, vRW[b][j], kk * 8192 + 1024)]
    return out
def qg_xread(stage, n):
    kk, tt = n >> 3, n & 7
    return rd128(XR + 4 * (n % 4), vRA[stage % 2][kk], tt * 2048)
def qg_mfmas(stage):
    out = []
    for n in range(16):
        kk, tt = n >> 3, n & 7
        for j in range(4):
            out.append(mf(acc2(tt * 4 + j), WB[kk] + 4 * j, XR + 4 * (n % 4), 0 if (stage == 0 and kk == 0) else None))
    return out

def kv_store_base(kind):
    if kind != 1:
        return L(f"""
        s_lshl_b32 s{sST}, s{sH}, 19
        s_add_u32 s{sST}, s{sST}, {KF_OFF:#x}
        s_lshl_b32 s{sT0}, s{sPI}, 16
        s_add_u32 s{sST}, s{sST}, s{sT0}
        s_lshr_b32 s{sT0}, s{sW}, 1
        s_lshl_b32 s{sT0}, s{sT0}, 15
        s_add_u32 s{sST}, s{sST}, s{sT0}
        s_and_b32 s{sT0}, s{sW}, 1
        s_lshl_b32 s{sT0}, s{sT0}, 11
        s_add_u32 s{sST}, s{sST}, s{sT0}
        """)
    return L(f"""
    s_lshl_b32 s{sST}, s{sH}, 19
    s_add_u32 s{sST}, s{sST}, {KF_OFF + VF_OFF:#x}
    s_lshl_b32 s{sT0}, s{sPI}, 16
    s_add_u32 s{sST}, s{sST}, s{sT0}
    s_lshr_b32 s{sT0}, s{sW}, 1
    s_and_b32 s{sT0}, s{sT0}, 1
    s_lshl_b32 s{sT0}, s{sT0}, 15
    s_add_u32 s{sST}, s{sST}, s{sT0}
    s_and_b32 s{sT0}, s{sW}, 1
    s_lshl_b32 s{sT0}, s{sT0}, 12
    s_add_u32 s{sST}, s{sST}, s{sT0}
    """)

def kv_packs(kind):
    A = lambda tt, j: ACC + (tt * 4 + j) * 4
    out = []
    for k in range(15, -1, -1):
        if kind != 1: x, y = A(k >> 1, 2 * (k & 1)), A(k >> 1, 2 * (k & 1) + 1)
        else: x, y = A(2 * (k >> 2), k & 3), A(2 * (k >> 2) + 1, k & 3)
        out += pack2(PK + 4 * k, x, y)[::-1]
    return out

def kv_store(kind, k):
    r = PK + 4 * k
    if kind != 1:
        s = [I(f"buffer_store_dwordx4 v[{r}:{r+3}], v{vD}, s[{SWS}:{SWS+3}], s{sST} offen offset:{(k&1)*1024}{KVSC}")]
        if k & 1: s.append(I(f"s_add_u32 s{sST}, s{sST}, 4096"))
    else:
        s = [I(f"buffer_store_dwordx4 v[{r}:{r+3}], v{vD}, s[{SWS}:{SWS+3}], s{sST} offen offset:{(k&3)*1024}{KVSC}")]
        if k & 3 == 3: s.append(I(f"s_add_u32 s{sST}, s{sST}, 8192"))
    return s

def signal(val, lab, vt=vPOLL):
    return L(f"""
    s_cmp_lg_u32 s{sW}, 0
    s_cbranch_scc1 {lab}
    v_mov_b32 v{vt}, {val}
    v_add_u32 v{vt}, s{sNL}, v{vt}
    v_mov_b32 v{vt+1}, s{sNH}
    s_mov_b64 exec, 1
    buffer_store_dwordx2 v[{vt}:{vt+1}], off, s[{SWS}:{SWS+3}], s{sFLAG} sc1 ; @opt
    s_mov_b64 exec, -1
    {lab}:
    """)

STUBS = []
SETS = {"A": (0x1, 0), "B": (0xffff, 0), "C": (0xffff0000, 0), "D": (0, 0xff)}
def set_mask(which, d):
    lo, hi = SETS[which]
    return L(f"s_mov_b32 {d}_lo, {lo:#x}\ns_mov_b32 {d}_hi, {hi:#x}")
def poll_load(which, vp, tag=None):
    return set_mask(which, "exec") + L(f"""
    buffer_load_dwordx2 v[{vp}:{vp+1}], v{vMAP}, s[{SWS}:{SWS+3}], 0 offen sc1{" ; @" + tag if tag else ""}
    s_mov_b64 exec, -1
    """)
def flag_chk(which, vp, n):
    lo, hi = SETS[which]
    return L(f"""
    s_add_u32 s{sT2}, s{sNL}, {n}
    v_subrev_u32 v{vp}, s{sT2}, v{vp}
    v_cmp_gt_u32 vcc, {8-n}, v{vp}
    v_cmp_eq_u32 s[{sT2}:{sT3}], s{sNH}, v{vp+1}
    s_and_b64 vcc, vcc, s[{sT2}:{sT3}]
    s_mov_b32 s{sT2}, {lo:#x}
    s_mov_b32 s{sT3}, {hi:#x}
    s_andn2_b64 vcc, s[{sT2}:{sT3}], vcc
    """)
def spin(which, vp, n, lab):
    return L(f"""
    s_mov_b32 s{sPC}, 0
    {lab}_L:
    s_sleep 6
    """) + poll_load(which, vp) + L(f"""
    s_add_u32 s{sPC}, s{sPC}, 1
    s_waitcnt vmcnt(0)
    """) + flag_chk(which, vp, n) + L(f"""
    s_cmp_ge_u32 s{sPC}, 0x40000
    s_cbranch_scc1 {lab}_C
    s_cbranch_vccnz {lab}_L
    """)
def poll_check(which, vp, tag, n, lab):
    s = [waitvm(tag)] + flag_chk(which, vp, n) + L(f"s_cbranch_vccnz {lab}_S\n{lab}_C:")
    STUBS.append(L(f"{lab}_S:") + spin(which, vp, n, lab) + L(f"s_branch {lab}_C"))
    return s

def tag_load():
    return L(f"buffer_load_dwordx2 v[{vPOLL}:{vTMP}], off, s[{SDBG}:{SDBG+3}], 0 sc1 ; @tag")
def tag_check(lab):
    rd = L(f"""
    v_readfirstlane_b32 s{sNL}, v{vPOLL}
    v_readfirstlane_b32 s{sNH}, v{vTMP}
    s_cmp_eq_u32 s{sNH}, 0
    """)
    STUBS.append(L(f"""
    {lab}_S:
    s_mov_b32 s{sPC}, 0
    {lab}_L:
    s_sleep 8
    buffer_load_dwordx2 v[{vPOLL}:{vTMP}], off, s[{SDBG}:{SDBG+3}], 0 sc1
    s_add_u32 s{sPC}, s{sPC}, 1
    s_cmp_ge_u32 s{sPC}, 0x40000
    s_waitcnt vmcnt(0)
    s_cbranch_scc1 {lab}_C
    """) + rd + L(f"s_cbranch_scc1 {lab}_L\ns_branch {lab}_C"))
    return [waitvm("tag")] + rd + L(f"s_cbranch_scc1 {lab}_S\n{lab}_C:")

def flag_map():
    a, b, c, d = 24, 25, 26, 27
    m = 80
    C, MT, PM, HH = m, m + 1, m + 2, m + 3
    g = [[i] for i in L(f"""
    s_and_b32 s{C}, s{sXCD}, 3
    s_lshr_b32 s{MT}, s{sXCD}, 2
    s_lshl_b32 s{MT}, s{MT}, 3
    s_add_u32 s{MT}, s{MT}, s{sPI}
    s_sub_u32 s{PM}, 15, s{MT}
    s_min_u32 s{PM}, s{PM}, s{MT}
    s_and_b32 s{HH}, s{sSLOT}, 3
    s_lshl_b32 s{m+4}, s{sPI}, 1
    s_sub_u32 s{m+5}, 30, s{m+4}
    s_lshl_b32 s{m+6}, s{MT}, 1
    s_mov_b32 s{m+8}, 0xcccc
    s_mov_b32 s{m+9}, 0
    s_mov_b32 s{m+10}, 0xffff0000
    s_mov_b32 s{m+11}, -1
    v_mov_b32 v{a}, s{m+5}
    v_mov_b32 v{b}, s{m+4}
    v_cndmask_b32 v{a}, v{a}, v{b}, s[{m+8}:{m+9}]
    v_mov_b32 v{b}, s{m+6}
    v_cndmask_b32 v{a}, v{a}, v{b}, s[{m+10}:{m+11}]
    v_and_b32 v{b}, 1, v{vLane}
    v_add_u32 v{a}, v{a}, v{b}
    v_mul_u32_u24 v{b}, 52, v{a}
    v_lshrrev_b32 v{b}, 8, v{b}
    v_lshlrev_b32 v{c}, 1, v{b}
    v_sub_u32 v{a}, v{a}, v{c}
    v_add_u32 v{a}, 3, v{a}
    v_and_b32 v{a}, 7, v{a}
    v_lshl_add_u32 v{a}, v{b}, 5, v{a}
    v_add_u32 v{a}, 24, v{a}
    s_mul_i32 s{m+4}, s{C}, 7
    v_and_b32 v{d}, 7, v{vLane}
    v_min_u32 v{b}, 6, v{d}
    v_add_u32 v{b}, s{m+4}, v{b}
    v_min_u32 v{b}, 26, v{b}
    v_and_b32 v{c}, 7, v{b}
    v_lshlrev_b32 v{c}, 2, v{c}
    v_lshrrev_b32 v{vT}, 3, v{b}
    v_add_u32 v{c}, v{c}, v{vT}
    v_cmp_le_u32 s[{m+8}:{m+9}], 24, v{b}
    v_subrev_u32 v{b}, 24, v{b}
    v_lshlrev_b32 v{b}, 3, v{b}
    v_add_u32 v{b}, s{PM}, v{b}
    v_mul_u32_u24 v{b}, 86, v{b}
    v_lshrrev_b32 v{b}, 8, v{b}
    v_lshlrev_b32 v{b}, 2, v{b}
    v_add_u32 v{b}, 3, v{b}
    v_cndmask_b32 v{c}, v{c}, v{b}, s[{m+8}:{m+9}]
    v_lshlrev_b32 v{c}, 3, v{c}
    v_add_u32 v{c}, s{PM}, v{c}
    s_mov_b32 s{m+8}, 0x00ff0000
    s_mov_b32 s{m+9}, 0
    v_cndmask_b32 v{a}, v{a}, v{c}, s[{m+8}:{m+9}]
    s_and_b32 s{m+4}, s{sXCD}, 4
    s_lshl_b32 s{m+4}, s{m+4}, 2
    s_add_u32 s{m+4}, s{m+4}, s{HH}
    s_lshl_b32 s{m+4}, s{m+4}, 3
    s_add_u32 s{m+4}, s{m+4}, s{sPI}
    v_and_b32 v{b}, 3, v{vLane}
    v_lshlrev_b32 v{b}, 5, v{b}
    v_add_u32 v{b}, s{m+4}, v{b}
    s_mov_b32 s{m+10}, 0xf0000000
    s_mov_b32 s{m+11}, 0
    v_cndmask_b32 v{a}, v{a}, v{b}, s[{m+10}:{m+11}]
    s_lshl_b32 s{m+4}, s{sH}, 3
    v_add_u32 v{b}, s{m+4}, v{d}
    s_mov_b32 s{m+8}, 0xff
    v_cndmask_b32 v{a}, v{a}, v{b}, s[{m+8}:{m+9}]
    s_lshl_b32 s{m+4}, s{C}, 6
    s_add_u32 s{m+4}, s{m+4}, s{PM}
    v_lshlrev_b32 v{b}, 3, v{d}
    v_add_u32 v{b}, s{m+4}, v{b}
    s_mov_b32 s{m+10}, 0
    s_mov_b32 s{m+11}, -1
    v_cndmask_b32 v{a}, v{a}, v{b}, s[{m+10}:{m+11}]
    v_lshlrev_b32 v{a}, 8, v{a}
    v_add_u32 v{vMAP}, {FLAG_OFF:#x}, v{a}
    """)]
    return g

def kv_part(kind):
    s = []
    for st in range(8):
        f = spread(kv_reads(st, 1, 1), 0, 24)
        if 1 <= st <= 5: f = [(-1, prefill(st - 1))] + f
        if st == 0 and "nopf" not in OPT: f += spread(pf_kv(), 2, 30)
        if st == 2: f.append((4, tag_load()))
        if st == 4 and "nopf" not in OPT: f += spread(pf_qg(kind, 0), 2, 30)
        if st == 6 and kind == 0: f += spread(gu_dma_addr(), 4, 30)
        if st == 7: f += spread(kv_store_base(kind), 24, 31)
        s += weave(kv_mfmas(kind, 0, st == 0), f)
        s += [waitvm(f"kv{st+1}" if st < 7 else "qg0", lgkm=True), I("s_barrier")] + ([stamp(2 + st)] if st in (0, 1, 2, 3, 7) else [])
        if st == 3: s += tag_check(f"TAG{kind}")
        if st < 7:
            f = spread(kv_reads(st + 1, 0, 0), 0, 24) + spread(kv_dma(st + 2) if st < 6 else qg_dma(kind, 0), 1, 25)
        else:
            f = spread(qg_dma(kind, 1), 1, 25)
            if kind == 0: f += [(-1, gu_read_addr(0))] + spread(gu_read_addr(1), 20, 31)
            if kind != 2: f += spread(qg_wreads(kind, 0, 0)[:2] + [qg_xread(0, 0)] + qg_wreads(kind, 0, 0)[2:] + [qg_xread(0, n) for n in (1, 2, 3)], 2, 24)
        s += weave(kv_mfmas(kind, 1, False, st == 7), f)
    return s

C1 = 2.0 * 0.7978845608028654 * 1.4426950408889634
QSC = 1.4426950408889634 * 128 ** -0.5
BARP = 52

def g_pass(ps):
    X, W, A, T = 32, 72, 112, 116
    ld = L(f"""
    s_lshl_b32 s{sT0}, s{sGI}, 6
    s_lshl_b32 s{sT1}, s{sW}, 4
    s_add_u32 s{sT0}, s{sT0}, s{sT1}
    s_add_u32 s{sT0}, s{sT0}, {8*ps}
    v_lshrrev_b32 v{T}, 3, v{vLane}
    v_add_u32 v{T}, s{sT0}, v{T}
    v_and_b32 v{T+1}, 7, v{vLane}
    v_lshlrev_b32 v{T+1}, 4, v{T+1}
    v_mul_u32_u24 v{T+2}, 1280, v{T}
    v_add_u32 v{T+2}, v{T+2}, v{T+1}
    """)
    for j in range(10):
        ld.append(I(f"buffer_load_dwordx4 v[{X+4*j}:{X+4*j+3}], v{T+2}, s[{SX}:{SX+3}], 0 offen offset:{j*128} ; @g{ps}"))
        if ps == 0: ld.append(I(f"buffer_load_dwordx4 v[{W+4*j}:{W+4*j+3}], v{T+1}, s[{SGW}:{SGW+3}], 0 offen offset:{j*128} ; @g{ps}"))
    s = L(f"""
    v_mov_b32 v{A}, 0
    v_mov_b32 v{A+1}, 0
    s_mov_b32 s{sT1}, 0xffff0000
    """) + [waitvm(f"g{ps}")]
    t = T + 4
    for r in range(40):
        s += L(f"""
        v_lshlrev_b32 v{t}, 16, v{X+r}
        v_and_b32 v{t+1}, s{sT1}, v{X+r}
        v_lshlrev_b32 v{t+2}, 16, v{W+r}
        v_and_b32 v{t+3}, s{sT1}, v{W+r}
        v_mul_f32 v{t}, v{t}, v{t+2}
        v_mul_f32 v{t+1}, v{t+1}, v{t+3}
        v_cvt_pk_bf16_f32 v{t}, v{t}, v{t+1}
        v_and_b32 v{t+1}, s{sT1}, v{t}
        v_lshlrev_b32 v{t}, 16, v{t}
        v_add_f32 v{A}, v{A}, v{t}
        v_add_f32 v{A+1}, v{A+1}, v{t+1}
        """)
    s += L(f"""
    v_add_f32 v{A}, v{A}, v{A+1}
    s_nop 1
    v_add_f32_dpp v{A}, v{A}, v{A} quad_perm:[1,0,3,2] row_mask:0xf bank_mask:0xf
    s_nop 1
    v_add_f32_dpp v{A}, v{A}, v{A} quad_perm:[2,3,0,1] row_mask:0xf bank_mask:0xf
    s_nop 1
    v_add_f32_dpp v{A}, v{A}, v{A} row_half_mirror row_mask:0xf bank_mask:0xf
    v_cvt_pk_bf16_f32 v{A}, v{A}, v{A}
    v_lshlrev_b32 v{A}, 16, v{A}
    v_mul_f32 v{A}, {f2h(-1.4426950408889634)}, v{A}
    v_exp_f32 v{A}, v{A}
    s_nop 0
    v_add_f32 v{A}, 1.0, v{A}
    v_rcp_f32 v{A}, v{A}
    s_nop 0
    v_cvt_pk_bf16_f32 v{A}, v{A}, v{A}
    v_lshlrev_b32 v{A}, 16, v{A}
    v_sub_f32 v{A+1}, 1.0, v{A}
    v_cvt_pk_bf16_f32 v{A+1}, v{A+1}, v{A+1}
    v_lshlrev_b32 v{A+1}, 16, v{A+1}
    v_lshlrev_b32 v{T}, 2, v{T}
    s_mov_b32 s{sT1}, {G_OFF:#x}
    s_cmp_ge_u32 s{sGI}, 32
    s_cselect_b32 s{sT1}, 0x70000000, s{sT1}
    buffer_store_dword v{A}, v{T}, s[{SWS}:{SWS+3}], s{sT1} offen sc1
    s_add_u32 s{sT1}, s{sT1}, 8192
    buffer_store_dword v{A+1}, v{T}, s[{SWS}:{SWS+3}], s{sT1} offen sc1
    """)
    return ld, s

EARLY = {0: [4, 5, 6], 1: [7, 8, 9], 2: [10, 11, 12], 3: [13, 14, 15]}
LATE = {1: [4, 5], 2: [6, 7], 3: [8, 9], 4: [10, 11], 5: [12, 13], 6: [14], 7: [15]}
def qg_part(kind, att_first, att_second, extra):
    s = []
    pend = []
    for st in range(10):
        f = []
        if pend: f += spread(pend, 0, 20)
        if kind != 2:
            f += [(4 * (n - 4) + 3, qg_xread(st, n)) for n in range(4, 16)]
            f += [(5 + 3 * k, r) for k, r in enumerate(qg_wreads(kind, st, 1))]
        if st == 0:
            pk = kv_packs(kind)
            if kind == 2: f += [(-1, [I("s_nop 7")])]
            f += spread(pk, 0, 11) + [(12 + 4 * k, kv_store(kind, k)) for k in range(4)]
        for i, k in enumerate(EARLY.get(st, [])):
            f.append((30 + 8 * i if st == 0 else 22 + 10 * i, guarded(1, kv_store(kind, k))))
        for i, k in enumerate(LATE.get(st, [])):
            f.append((21 + 16 * i, guarded(0, kv_store(kind, k))))
        if st == 1 and "nopf" not in OPT: f += spread(pf_qg(kind, 1), 24, 46)
        if kind == 2:
            if st == 0: f.append((47, g_pass(0)[0]))
            if st == 1: f.append((47, g_pass(0)[1] + g_pass(1)[0]))
            if st == 2: f.append((47, g_pass(1)[1]))
        if st == 8: f += spread(flag_map(), 6, 40) + [(41, poll_load("A", vPOLL, "p1"))]
        f += extra.get(st, [])
        d = []
        if st < 9:
            bar = [waitvm(f"qg{st+1}", lgkm=True), I("s_barrier"), stamp(10 + st)]
            if st == 4: bar += guarded(1, signal(1, f"SIG1_{kind}"))
            if st == 8: bar += poll_check("A", vPOLL, "p1", 1, f"PL1_{kind}")
            f.append((BARP, bar))
            if kind != 2:
                w = qg_wreads(kind, st + 1, 0)
                f.append((BARP, w[:2] + [qg_xread(st + 1, 0)]))
                f += [(BARP + 1 + k, w[2 + k]) for k in range(6)]
                f += [(55, qg_xread(st + 1, 1)), (59, qg_xread(st + 1, 2)), (63, qg_xread(st + 1, 3))]
            d = qg_dma(kind, st + 2) if st < 8 else att_first
            f += spread(d[:3], BARP + 2, 63)
        else:
            bar = [waitvm("k0", lgkm=True), I("s_barrier"), stamp(19)] + (signal(2, f"SIG2_{kind}") if kind != 1 else [])
            if kind == 0: bar += [I("s_setprio 1")]
            f.append((BARP - 4, bar))
            f += spread(att_second, BARP - 3, 63)
        pend = d[3:]
        s += weave(qg_mfmas(st) if kind != 2 else [], f)
    assert not pend
    return s

def geglu():
    s = L(f"""
    s_sub_u32 s{sT0}, 15, s{sPI}
    s_cmp_lt_u32 s{sW}, 2
    s_cselect_b32 s{sST}, s{sT0}, s{sPI}
    s_mul_i32 s{sST}, s{sST}, {AF_MT}
    s_add_u32 s{sST}, s{sST}, {AF_OFF:#x}
    s_lshl_b32 s{sT1}, s{sFB}, 14
    s_add_u32 s{sST}, s{sST}, s{sT1}
    s_and_b32 s{sT0}, s{sW}, 1
    s_lshl_b32 s{sT0}, s{sT0}, 10
    s_add_u32 s{sST}, s{sST}, s{sT0}
    s_mov_b32 s{sT0}, {f2h(-C1 * 0.044715)}
    v_mov_b32 v{vT}, {f2h(-C1)}
    """)
    for tt in range(8):
        tb = 32 + (tt % 2) * 16
        regs = [(acc2(tt * 4 + j) + r, acc2(tt * 4 + 2 + j) + r) for j in range(2) for r in range(4)]
        T = [tb + k for k in range(8)]
        for k, (a, u) in enumerate(regs): s.append(I(f"v_mul_f32 v{T[k]}, v{a}, v{a}"))
        for k, (a, u) in enumerate(regs): s.append(I(f"v_fma_f32 v{T[k]}, v{T[k]}, s{sT0}, v{vT}"))
        for k, (a, u) in enumerate(regs): s.append(I(f"v_mul_f32 v{T[k]}, v{T[k]}, v{a}"))
        for k, (a, u) in enumerate(regs): s.append(I(f"v_exp_f32 v{T[k]}, v{T[k]}"))
        for k, (a, u) in enumerate(regs): s.append(I(f"v_add_f32 v{T[k]}, 1.0, v{T[k]}"))
        for k, (a, u) in enumerate(regs): s.append(I(f"v_rcp_f32 v{T[k]}, v{T[k]}"))
        for k, (a, u) in enumerate(regs): s.append(I(f"v_mul_f32 v{a}, v{a}, v{u}"))
        for k, (a, u) in enumerate(regs): s.append(I(f"v_mul_f32 v{T[k]}, v{T[k]}, v{a}"))
        o = tb + 8
        s += pack2(o, T[0], T[4])
        s.append(I(f"buffer_store_dwordx4 v[{o}:{o+3}], v{vD}, s[{SWS}:{SWS+3}], s{sST} offen offset:{(tt%2)*2048} sc1"))
        if tt % 2 == 1 and tt < 7: s.append(I(f"s_add_u32 s{sST}, s{sST}, 4096"))
    s.append(I("s_setprio 0"))
    return s

QB_LDS = 32768
def qepi():
    s = L(f"""
    s_bitcmp1_b32 s{sW}, 1
    s_cselect_b32 s{sT0}, {QB_LDS//1024}, {QS//1024 - 128}
    s_cselect_b32 s{sT1}, 0, 128
    s_add_u32 s{sT0}, s{sT0}, s{sT1}
    s_and_b32 s{sT1}, s{sW}, 1
    s_lshl_b32 s{sT1}, s{sT1}, 1
    s_add_u32 s{sT0}, s{sT0}, s{sT1}
    s_lshl_b32 s{sT0}, s{sT0}, 10
    v_add_u32 v{vTMP}, s{sT0}, v{vD}
    s_mov_b32 s{sT0}, {f2h(QSC)}
    """)
    k = 0
    for tt in range(8):
        for jj in range(2):
            x, y = acc2(tt * 4 + 2 * jj), acc2(tt * 4 + 2 * jj + 1)
            s += [I(f"v_mul_f32 v{x+r}, s{sT0}, v{x+r}") for r in range(4)] + [I(f"v_mul_f32 v{y+r}, s{sT0}, v{y+r}") for r in range(4)]
            tmp = 32 + 4 * (k % 8); k += 1
            s += pack2(tmp, x, y)
            s.append(I(f"ds_write_b128 v{vTMP}, v[{tmp}:{tmp+3}] offset:{tt*4096 + jj*1024}"))
    return s
```

```python
from fz1 import *

sKoff, sVoff, mK, mV = 44, 45, 46, 47
sC1, sC2, sMO, sKX, sKXL, sTHR = 48, 49, 50, 51, 52, 53
sRET = 54
sSIG, sSTA, sSTB = 56, 57, 58
sEXW, sEXR, sMLW, sMLR = 32, 33, 34, 35
sMASK = 60
vK, vV, vGB1, vQ = 5, 6, 7, 8
vTS = [9, 10]; vL = [11, 12]
vGA, vGB0, vNEG = 13, 14, 15
vA = [16, 17, 18, 19, 20, 21, 22, 23]
E = 24
NM = [32, 36]
P1R = 40; P0R = [56, 48]
FR = 64
S = [128, 96]
Q = 160
O = 192
Sreg = lambda buf, a, qb: S[buf] + (a * 2 + qb) * 4
Qreg = lambda qb, u: Q + (qb * 4 + u) * 4
Oreg = lambda b, qb: O + (b * 2 + qb) * 4
SLOTB, HALFB = 0x10000, 0x4000
ML_LDS = 151552

def k_dma(tag=None):
    g = dma4(f"s_mov_b32 m0, s{mK}", [vD] * 4, SWS, sKoff, tag, 32768, " sc1")
    g[-1].append(I(f"s_xor_b32 s{mK}, s{mK}, {SLOTB:#x}"))
    return g
def v_dma(tag=None):
    g = dma4(f"s_mov_b32 m0, s{mV}", [vD] * 4, SWS, sVoff, tag, 32768, " sc1")
    g[-1].append(I(f"s_xor_b32 s{mV}, s{mV}, {SLOTB:#x}"))
    return g

def att_scalars():
    return L(f"""
    s_lshl_b32 s{sKoff}, s{sH}, 19
    s_add_u32 s{sKoff}, s{sKoff}, s{mA}
    s_add_u32 s{sKoff}, s{sKoff}, {KF_OFF:#x}
    s_add_u32 s{sVoff}, s{sKoff}, {VF_OFF:#x}
    s_mov_b32 s{mK}, s{mA}
    s_add_u32 s{mV}, s{mA}, {32768 + SLOTB}
    """)

def mask_cmps(typ, t):
    s = L(f"""
    s_and_b32 s{sT3}, s{sW}, 3
    s_lshl_b32 s{sT3}, s{sT3}, 5
    """)
    if typ: s += L(f"s_sub_i32 s{sT3}, s{sT3}, 64")
    s += L(f"""
    v_lshlrev_b32 v{t}, 2, v{vG}
    v_sub_u32 v{t}, v{vI16}, v{t}
    v_add_u32 v{t}, s{sT3}, v{t}
    """)
    for d in range(5):
        for rr in range(4):
            m = sMASK + 2 * (d * 4 + rr)
            s.append(I(f"v_cmp_gt_i32 s[{m}:{m+1}], {16*(d-1)+rr}, v{t}"))
    return s

def att_setup(grp):
    s = L(f"""
    v_mov_b32 v{vK}, v{vD}
    v_add_u32 v{vV}, {32768 + SLOTB}, v{vD}
    s_and_b32 s{sT0}, s{sW}, 3
    s_lshl_b32 s{sT1}, s{sT0}, 13
    s_add_u32 s{sT1}, s{sT1}, {QB_LDS if grp else QS}
    v_add_u32 v{vQ}, s{sT1}, v{vD}
    s_add_u32 s{sC1}, s{sPI}, {1 - grp}
    s_sub_u32 s{sC2}, 7, s{sPI}
    s_mov_b32 s{sKXL}, {HALFB if grp else SLOTB:#x}
    s_mov_b32 s{sTHR}, {f2h(256.0)}
    s_lshl_b32 s{sT1}, s{sH}, 15
    s_add_u32 s{sT1}, s{sT1}, {AF_OFF + 27*16384:#x}
    s_lshl_b32 s{sT2}, s{sT0}, 12
    s_add_u32 s{sT1}, s{sT1}, s{sT2}
    s_mul_i32 s{sT2}, s{sPI}, {AF_MT}
    s_add_u32 s{sSTB}, s{sT1}, s{sT2}
    s_sub_u32 s{sT2}, 15, s{sPI}
    s_mul_i32 s{sT2}, s{sT2}, {AF_MT}
    s_add_u32 s{sSTA}, s{sT1}, s{sT2}
    """)
    g = [[i] for i in s]
    if grp:
        g += [L(f"s_add_u32 s{sSTA}, s{sSTA}, 2048"), L(f"s_mov_b32 s{sMO}, 1")]
    else:
        g += [L(f"s_cmp_eq_u32 s{sPI}, 7\ns_cselect_b32 s{sMO}, 1, 0")]
    g += [L(f"s_mov_b32 s{sSIG}, 1")]
    g += [[i] for i in mask_cmps(0, vTMP)]
    return g

def g_loads():
    t = vA[7]
    return L(f"""
    s_and_b32 s{sT0}, s{sW}, 3
    s_lshl_b32 s{sT0}, s{sT0}, 7
    s_add_u32 s{sT0}, s{sT0}, {G_OFF:#x}
    s_sub_u32 s{sT1}, 15, s{sPI}
    s_lshl_b32 s{sT1}, s{sT1}, 9
    s_add_u32 s{sT1}, s{sT1}, s{sT0}
    s_lshl_b32 s{sT2}, s{sP}, 6
    s_add_u32 s{sT1}, s{sT1}, s{sT2}
    v_lshlrev_b32 v{t}, 2, v{vI16}
    buffer_load_dword v{vGA}, v{t}, s[{SWS}:{SWS+3}], s{sT1} offen sc1
    s_lshl_b32 s{sT1}, s{sPI}, 9
    s_add_u32 s{sT1}, s{sT1}, s{sT0}
    buffer_load_dword v{vGB0}, v{t}, s[{SWS}:{SWS+3}], s{sT1} offen sc1
    buffer_load_dword v{vGB1}, v{t}, s[{SWS}:{SWS+3}], s{sT1} offen offset:64 sc1
    """)

def first_stub(name):
    lab = f"{name}_F"
    body = signal(3, f"{lab}_SG", vA[0]) + flag_chk("B", vA[6], 2) + L(f"s_cbranch_vccz {lab}_C") + spin("B", vA[6], 2, lab) + L(f"{lab}_C:")
    lin = signal(3, f"{lab}_SG", vA[0]) + flag_chk("B", vA[6], 2) + g_loads()
    return L(f"{lab}:") + [stamp(7)] + body + [stamp(6)] + g_loads() + L(f"s_mov_b32 s{sSIG}, 0\ns_branch {lab}B"), lin

def q_reads():
    return [rd128(Qreg(qb, u), vQ, (qb * 4 + u) * 1024) for qb in range(2) for u in range(4)]

def kread(n): return rd128(FR + 4 * (n % 8), vK, n * 1024)
def vread(f): return rd128(FR + 4 * (f % 8), vV, f * 1024)

def qk_mfmas(buf, zero_c):
    out = []
    for n in range(16):
        a, u = n >> 2, n & 3
        for qb in range(2):
            c = None if u else (0 if zero_c else NM[qb])
            out.append(mf(Sreg(buf, a, qb), FR + 4 * (n % 8), Qreg(qb, u), c))
    return out

def pv_mfmas(par):
    out = []
    for f in range(16):
        u, b = f >> 3, f & 7
        for qb in range(2):
            pr = (P0R[par] if u == 0 else P1R) + 4 * qb
            out.append(mf(Oreg(b, qb), FR + 4 * (f % 8), pr))
    return out

def softmax_half(buf, hf, pbase):
    pairs = [(a, qb, r) for a in (2 * hf, 2 * hf + 1) for r in (0, 2) for qb in range(2)]
    ops = []
    started = [hf == 1, hf == 1]
    def tail(p):
        a, qb, r = pairs[p]
        e = E + 2 * (p % 4)
        o = []
        if started[qb]:
            o += [I(f"v_add_f32 v{vTS[qb]}, v{vTS[qb]}, v{e}"), I(f"v_add_f32 v{vTS[qb]}, v{vTS[qb]}, v{e+1}")]
        else:
            o += [I(f"v_add_f32 v{vTS[qb]}, v{e}, v{e+1}")]; started[qb] = True
        o.append(cvtpk(pbase + 4 * qb + 2 * (a & 1) + r // 2, e, e + 1))
        return o
    for p, (a, qb, r) in enumerate(pairs):
        e = E + 2 * (p % 4)
        sr = Sreg(buf, a, qb) + r
        ops += [I(f"v_exp_f32 v{e}, v{sr}"), I(f"v_exp_f32 v{e+1}, v{sr+1}")]
        if p >= 1: ops += tail(p - 1)
    ops += [I("s_nop 0")] + tail(len(pairs) - 1)
    return ops

def xlane(op, x, t):
    return [L(f"v_mov_b32 v{t}, v{x}\ns_nop 1\nv_permlane32_swap_b32 v{t}, v{x}\ns_nop 1\n{op} v{x}, v{x}, v{t}"),
            L(f"v_mov_b32 v{t}, v{x}\ns_nop 1\nv_permlane16_swap_b32 v{t}, v{x}\ns_nop 1\n{op} v{x}, v{x}, v{t}")]
flat = lambda g: sum(([x] if isinstance(x, I) else x for x in g), [])

def rowmax(buf, qb, dst):
    regs = [Sreg(buf, a, qb) + r for a in range(4) for r in range(4)]
    s = [I(f"v_max3_f32 v{dst}, v{regs[0]}, v{regs[1]}, v{regs[2]}")]
    for k in range(3, 15, 2):
        s.append(I(f"v_max3_f32 v{dst}, v{dst}, v{regs[k]}, v{regs[k+1]}"))
    s.append(I(f"v_max_f32 v{dst}, v{dst}, v{regs[15]}"))
    return s

def fresh_max(buf):
    B = []
    r0, r1 = rowmax(buf, 0, vA[0]), rowmax(buf, 1, vA[1])
    for a, b in zip(r0, r1): B += [a, b]
    for qb in range(2):
        B += xlane("v_max_f32", vA[qb], vA[2 + qb])
        B += L(f"v_max_f32 v{vA[qb]}, {f2h(-1.0e30)}, v{vA[qb]}")
    for qb in range(2):
        B += [I(f"v_sub_f32 v{Sreg(buf, a, qb)+r}, v{Sreg(buf, a, qb)+r}, v{vA[qb]}") for a in range(2) for r in range(4)]
    for qb in range(2):
        B += [I(f"v_sub_f32 v{Sreg(buf, a, qb)+r}, v{Sreg(buf, a, qb)+r}, v{vA[qb]}") for a in range(2, 4) for r in range(4)]
        B += [I(f"v_sub_f32 v{NM[qb]+r}, 0, v{vA[qb]}") for r in range(4)]
    return B

def mask_block(buf):
    s = []
    for a in range(4):
        for qb in range(2):
            for rr in range(4):
                m = sMASK + 2 * ((a - qb + 1) * 4 + rr)
                r = Sreg(buf, a, qb) + rr
                s.append(I(f"v_cndmask_b32 v{r}, v{r}, v{vNEG}, s[{m}:{m+1}]"))
    return s

def check_ops():
    return L(f"""
    v_max_f32 v{vA[0]}, v{vTS[0]}, v{vTS[1]}
    v_cmp_lt_f32 vcc, s{sTHR}, v{vA[0]}
    """)

def rare(par, with_next, name):
    cur, nxt = par, par ^ 1
    s = L(f"{name}:\ns_nop 7")
    for qb in range(2):
        d = vA[qb]
        s += rowmax(cur, qb, d) + flat(xlane("v_max_f32", d, vA[2]))
        s += L(f"v_max_f32 v{d}, 0, v{d}")
    for qb in range(2):
        d = vA[qb]; f = vA[4 + qb]
        s += L(f"v_exp_f32 v{f}, -v{d}")
        for buf in ((cur, nxt) if with_next else (cur,)):
            for a in range(4):
                for r in range(4):
                    x = Sreg(buf, a, qb) + r
                    s.append(I(f"v_sub_f32 v{x}, v{x}, v{d}"))
        for r in range(4):
            s.append(I(f"v_sub_f32 v{NM[qb]+r}, v{NM[qb]+r}, v{d}"))
        for b in range(8):
            for r in range(4):
                x = Oreg(b, qb) + r
                s.append(I(f"v_mul_f32 v{x}, v{x}, v{f}"))
        s.append(I(f"v_mul_f32 v{vL[qb]}, v{vL[qb]}, v{f}"))
    s += softmax_half(cur, 0, P0R[par]) + softmax_half(cur, 1, P1R)
    s += L(f"s_nop 1\ns_setpc_b64 s[{sRET}:{sRET+1}]")
    return s

def ladd():
    return [I(f"v_add_f32 v{vL[qb]}, v{vL[qb]}, v{vTS[qb]}") for qb in range(2)]

NPRE = 6
def it(name):
    par = {"E1": 0, "O1": 1, "E1s": 0, "O1s": 1, "I0": 0, "I1": 1}[name]
    nx = par ^ 1
    qk = qk_mfmas(nx, name == "O1s")
    pv = pv_mfmas(par)
    fa = [(2 * n - 12, kread(n)) for n in range(NPRE, 16)] + [(2 * (16 + f) - 12, vread(f)) for f in range(0, 6)]
    d = {"E1": v_dma(), "E1s": v_dma(), "O1": k_dma(), "O1s": k_dma()}.get(name) or (k_dma() + v_dma())
    sm = softmax_half(par, 1, P1R)
    cond = {"O1": f"s_cmp_eq_u32 s{sC1}, s{sMO}", "O1s": f"s_cmp_eq_u32 s{sPI}, 7", "I1": f"s_cmp_eq_u32 s{sC2}, 1"}.get(name)
    fa += spread(d, 1, 17) + spread(sm, 0, 29) + [(29, check_ops())]
    if name == "E1s": fa += spread(mask_cmps(1, vA[3]), 2, 26)
    if cond: fa += [(30, L(cond))]
    A = weave(qk, fa)
    rname = "RARE1B" if name == "O1s" else f"RARE{par}"
    mid = L(f"s_cbranch_vccnz {name}_R\n{name}_RB:")
    stubs = L(f"{name}_R:\ns_call_b64 s[{sRET}:{sRET+1}], {rname}") + (L(cond) if cond else []) + L(f"s_branch {name}_RB")
    mstub = []
    if cond:
        mid += L(f"s_cbranch_scc1 {name}_M\n{name}_MB:")
        mstub = L(f"{name}_M:\ns_nop 7") + mask_block(nx) + L(f"s_branch {name}_MB")
    if name == "E1s":
        mid += [I("s_nop 5")] + mask_block(nx)
    kx = {"E1": f"{SLOTB|HALFB:#x}", "O1": f"s{sKX}"}.get(name, f"{SLOTB:#x}")
    vx = {"E1": HALFB, "E1s": HALFB, "O1": SLOTB | HALFB}.get(name, SLOTB)
    fb = [(2 * f - 12, vread(f)) for f in range(6, 16)]
    vm = 4 if name in ("E1", "E1s") else 0
    bar = L(f"""
    s_waitcnt vmcnt({vm}) lgkmcnt(0)
    s_barrier
    v_xor_b32 v{vK}, {kx}, v{vK}
    v_xor_b32 v{vV}, {vx:#x}, v{vV}
    """) + [kread(0), kread(1)]
    sig = []; siglin = []
    if name in ("E1", "E1s"):
        bar += L(f"s_cmp_lg_u32 s{sSIG}, 0\ns_cbranch_scc1 {name}_F\n{name}_FB:")
        sig, siglin = first_stub(name)
    fb += [(22, bar)] + [(24 + 2 * j, kread(2 + j)) for j in range(NPRE - 2)]
    if name == "O1s":
        pre = [I(f"v_add_f32 v{vA[6+qb]}, v{vL[qb]}, v{vTS[qb]}") for qb in range(2)] + [I(f"v_mov_b32 v{vL[qb]}, 0") for qb in range(2)]
        fb += spread(pre, 0, 2) + spread(fresh_max(nx), 2, 16) + spread(softmax_half(nx, 0, P0R[nx]), 16, 31)
    else:
        fb += spread(ladd() + softmax_half(nx, 0, P0R[nx]), 0, 30)
    if name == "E1s":
        fb += [(0, L(f"v_add_u32 v{vQ}, {QS - QB_LDS}, v{vQ}"))] + [(1 + 2 * k, r) for k, r in enumerate(q_reads())]
    if name == "O1":
        fb += [(10, L(f"s_cmp_eq_u32 s{sC1}, 1\ns_cselect_b32 s{sKX}, s{sKXL}, {HALFB:#x}")), (29, L(f"s_sub_u32 s{sC1}, s{sC1}, 1\ns_cmp_eq_u32 s{sC1}, 0"))]
    if name == "I1":
        fb += [(29, L(f"s_sub_u32 s{sC2}, s{sC2}, 1\ns_cmp_eq_u32 s{sC2}, 0"))]
    B = weave(pv, fb)
    return dict(A=A, mid=mid, B=B, rstub=stubs, mstub=mstub, sig=sig, siglin=siglin, rname=rname)

def pro():
    qk = qk_mfmas(0, True)
    rd = [(max(-1, 2 * n - 12), kread(n)) for n in range(16)]
    z = [I(f"v_mov_b32 v{O+k}, 0") for k in range(64)] + [I(f"v_mov_b32 v{vL[qb]}, 0") for qb in range(2)] + L(f"v_mov_b32 v{vNEG}, {f2h(-3.0e38)}")
    A = q_reads() + weave(qk, rd + spread(z, 0, 32) + [(20, L(f"v_xor_b32 v{vK}, {HALFB:#x}, v{vK}"))]
                                         + [(20 + 2 * n, kread(n)) for n in range(NPRE)] + [(30, L(f"s_cmp_eq_u32 s{sC1}, 0"))])
    mid = L("s_nop 1\ns_cbranch_scc1 PRO_M\nPRO_MB:")
    B = flat(fresh_max(0)) + softmax_half(0, 0, P0R[0]) + poll_load("B", vA[6], "p2")
    B += [stamp(8), I("s_barrier"), stamp(22)] + L(f"s_cmp_eq_u32 s{sC1}, 0")
    mstub = L("PRO_M:\ns_nop 4") + mask_block(0) + L("s_branch PRO_MB")
    M = I("; @@PM")
    lin = resolve_vm(A + [M] + B)
    k = lin.index(M)
    return dict(A=lin[:k], mid=mid, B=lin[k+1:], mstub=mstub)

def bepi():
    s = flat(xlane("v_add_f32", vA[6], vA[0]) + xlane("v_add_f32", vA[7], vA[1]))
    s += L(f"""
    v_rcp_f32 v{vA[6]}, v{vA[6]}
    v_rcp_f32 v{vA[7]}, v{vA[7]}
    s_nop 0
    v_mul_f32 v{vA[6]}, v{vA[6]}, v{vGB0}
    v_mul_f32 v{vA[7]}, v{vA[7]}, v{vGB1}
    """)
    k = 0
    for u in range(4):
        for qb in range(2):
            x, y = Oreg(2 * u, qb), Oreg(2 * u + 1, qb)
            s += [I(f"v_mul_f32 v{x+r}, v{x+r}, v{vA[6+qb]}") for r in range(4)] + [I(f"v_mul_f32 v{y+r}, v{y+r}, v{vA[6+qb]}") for r in range(4)]
            tmp = S[1] + 4 * (k % 8); k += 1
            s += pack2(tmp, x, y)
            s.append(I(f"buffer_store_dwordx4 v[{tmp}:{tmp+3}], v{vD}, s[{SWS}:{SWS+3}], s{sSTB} offen offset:{qb*2048 + (u&1)*1024} sc1"))
            s += [I(f"v_mov_b32 v{x+r}, 0") for r in range(4)] + [I(f"v_mov_b32 v{y+r}, 0") for r in range(4)]
        if u == 1: s.append(I(f"s_add_u32 s{sSTB}, s{sSTB}, 16384"))
    s += [stamp(23)]
    return s

def fin(p, p3_poll, p3_pre):
    A = [stamp(24)] + p3_poll + [vread(f) for f in range(6)]
    A += softmax_half(0, 1, P1R) + check_ops()
    A += L(f"""
    s_and_b32 s{sT0}, s{sW}, 3
    s_lshl_b32 s{sEXW}, s{sT0}, 13
    s_add_u32 s{sEXW}, s{sEXW}, {32768 + p*65536}
    s_xor_b32 s{sEXR}, s{sEXW}, {SLOTB:#x}
    s_lshl_b32 s{sMLW}, s{sW}, 9
    s_add_u32 s{sMLW}, s{sMLW}, {ML_LDS}
    s_lshl_b32 s{sMLR}, s{sT0}, 9
    s_add_u32 s{sMLR}, s{sMLR}, {ML_LDS + (1-p)*2048}
    """)
    mid = L(f"s_cbranch_vccnz FIN{p}_R\nFIN{p}_RB:")
    rstub = L(f"FIN{p}_R:\ns_call_b64 s[{sRET}:{sRET+1}], RARE0\ns_branch FIN{p}_RB")
    post = ladd() + xlane("v_add_f32", vL[0], vA[0]) + xlane("v_add_f32", vL[1], vA[1])
    aW, aR, mW_, mR_ = vA[4], vA[5], vA[6], vA[7]
    post += L(f"""
    v_add_u32 v{aW}, s{sEXW}, v{vD}
    v_add_u32 v{aR}, s{sEXR}, v{vD}
    v_lshrrev_b32 v{mR_}, 1, v{vD}
    v_add_u32 v{mW_}, s{sMLW}, v{mR_}
    v_add_u32 v{mR_}, s{sMLR}, v{mR_}
    v_mov_b32 v{E}, v{NM[1-p]}
    v_mov_b32 v{E+1}, v{vL[1-p]}
    ds_write_b64 v{mW_}, v[{E}:{E+1}]
    """)
    B = weave(pv_mfmas(0), [(2 * f - 12, vread(f)) for f in range(6, 16)] + spread(post, 0, 16) + p3_pre)
    B += L(f"""
    s_waitcnt lgkmcnt(0)
    s_barrier
    ds_read_b64 v[{E+4}:{E+5}], v{mR_}
    s_nop 4
    """)
    X = S[0]
    B += [I(f"ds_write_b128 v{aW}, v[{Oreg(b, 1-p)}:{Oreg(b, 1-p)+3}] offset:{b*1024}") for b in range(8)]
    B += L(f"""
    v_min_f32 v{E}, v{NM[p]}, v{E+4}
    v_sub_f32 v{E+1}, v{E}, v{NM[p]}
    v_sub_f32 v{E}, v{E}, v{E+4}
    v_exp_f32 v{E+1}, v{E+1}
    v_exp_f32 v{E}, v{E}
    s_nop 0
    v_mul_f32 v{E+3}, v{vL[p]}, v{E+1}
    v_fma_f32 v{E+3}, v{E+5}, v{E}, v{E+3}
    v_rcp_f32 v{E+3}, v{E+3}
    s_nop 0
    v_mul_f32 v{E+3}, v{E+3}, v{vGA}
    v_mul_f32 v{E+1}, v{E+1}, v{E+3}
    v_mul_f32 v{E}, v{E}, v{E+3}
    """)
    B += [I(f"v_mul_f32 v{Oreg(b,p)+r}, v{Oreg(b,p)+r}, v{E+1}") for b in range(8) for r in range(4)]
    B += L("s_waitcnt lgkmcnt(0)\ns_barrier")
    B += [rd128(X + 4 * b, aR, b * 1024) for b in range(8)]
    for u in range(4):
        for b in (2 * u, 2 * u + 1):
            o = Oreg(b, p)
            B += [I(f"v_fma_f32 v{o+r}, v{X+4*b+r}, v{E}, v{o+r}") for r in range(4)]
        tmp = FR + 4 * u
        B += pack2(tmp, Oreg(2 * u, p), Oreg(2 * u + 1, p))
        if u == 2: B.append(I(f"s_add_u32 s{sSTA}, s{sSTA}, 16384"))
        B.append(I(f"buffer_store_dwordx4 v[{tmp}:{tmp+3}], v{vD}, s[{SWS}:{SWS+3}], s{sSTA} offen offset:{(u&1)*1024} sc1 ; @ctx"))
    B += [stamp(25)]
    return dict(A=A, mid=mid, B=B, rstub=rstub)
```

```python
from fz2 import *

NSLOT, NST = 4, 23
AOFF = [0, 16384, 32768, 49152]
WOFF = [65536, 131072, 86016, 106496]
sC, sMT, sNT, soD, mD, so2, sPB, sCNT = 60, 61, 62, 63, 64, 65, 66, 67
sMSK, sMH, sNH = 68, 71, 72
SOUT = 76
pDW = [96, 97, 98, 99, 100]
pA = [101, 102, 103, 104]
pW = [[105, 106], [107, 108], [109, 110], [111, 112]]
pOM = [113, 114, 115, 116]
pT = [117, 118, 119, 120]
pPL = 122
PSET = [24, 60]
PACC = 128
PX = 208
acc = lambda j, q: PACC + (q * 5 + j) * 4

def p3_scalars():
    return L(f"""
    s_and_b32 s{sC}, s{sXCD}, 3
    s_lshr_b32 s{sMT}, s{sXCD}, 2
    s_lshl_b32 s{sMT}, s{sMT}, 3
    s_add_u32 s{sMT}, s{sMT}, s{sPI}
    s_and_b32 s{sNT}, s{sSLOT}, 3
    s_lshr_b32 s{sMH}, s{sW}, 1
    s_and_b32 s{sMH}, s{sMH}, 1
    s_and_b32 s{sNH}, s{sW}, 1
    """)

def setup_dma(kp):
    t0, t1, t2, t3 = pT
    s = []
    if kp == 0:
        s += L(f"""
        s_mul_i32 s{sT0}, s{sW}, 320
        s_mov_b32 s{sT1}, 3277
        """)
        for n in range(5):
            s += L(f"""
            v_lshrrev_b32 v{t0}, 4, v{vD}
            v_add_u32 v{t0}, s{sT0}, v{t0}
            v_add_u32 v{t0}, {64*n}, v{t0}
            v_mul_lo_u32 v{t1}, v{t0}, s{sT1}
            v_lshrrev_b32 v{t1}, 16, v{t1}
            v_mul_u32_u24 v{t2}, 20, v{t1}
            v_sub_u32 v{t2}, v{t0}, v{t2}
            v_lshrrev_b32 v{t3}, 1, v{t1}
            v_and_b32 v{t3}, 2, v{t3}
            v_xor_b32 v{t2}, v{t2}, v{t3}
            v_mul_u32_u24 v{t1}, 1280, v{t1}
            v_lshl_add_u32 v{pDW[n]}, v{t2}, 4, v{t1}
            """)
            if 0 < n < 4: s += L(f"v_subrev_u32 v{pDW[n]}, {n*1024}, v{pDW[n]}")
        s += L(f"""
        s_mul_i32 s{sT0}, s{sNT}, 320
        s_mul_i32 s{soD}, s{sC}, {7*64*1280}
        s_add_u32 s{soD}, s{soD}, s{sT0}
        s_mul_i32 s{so2}, s{sC}, {16*64*1280}
        s_add_u32 s{so2}, s{so2}, s{sT0}
        s_mul_i32 s{mD}, s{sW}, 5120
        """)
    else:
        s += L(f"""
        s_mul_i32 s{sT0}, s{sMT}, {AF_MT}
        s_add_u32 s{sT0}, s{sT0}, {AF_OFF:#x}
        s_sub_u32 s{mD}, s{sW}, 4
        s_lshl_b32 s{mD}, s{mD}, 12
        s_add_u32 s{sT0}, s{sT0}, s{mD}
        s_mul_i32 s{soD}, s{sC}, {7*16384}
        s_add_u32 s{soD}, s{soD}, s{sT0}
        s_lshl_b32 s{so2}, s{sC}, 18
        s_add_u32 s{so2}, s{so2}, s{sT0}
        s_add_u32 s{so2}, s{so2}, {27*16384}
        """)
    return s

def st_dma(kp, st):
    tag = f"d{st}"
    so = soD if st < 7 else so2
    if kp == 0:
        buf = WOFF[st % NSLOT]
        R = SWD if st < 7 else SWO
        g = dma4(f"s_add_u32 m0, s{mD}, {buf}", pDW, R, so, tag, 0)
        g += [[I(f"s_add_u32 m0, s{mD}, {buf + 4096}"), I("s_nop 0"), dma(pDW[4], R, so, 0, tag), I(f"s_add_u32 s{so}, s{so}, {64*1280}")]]
    else:
        g = dma4(f"s_add_u32 m0, s{mD}, {AOFF[st % NSLOT]}", [vD] * 4, SWS, so, tag, 16384, " sc1")
        if st == 6: g[0] = L(f"s_cmp_eq_u32 s{sC}, 3\ns_cselect_b32 s{soD}, 0x70000000, s{soD}") + g[0]
    return g

def setup_rd():
    t0, t1, t2, t3 = pT
    g = [[i] for i in L(f"""
    s_lshl_b32 s{sT0}, s{sMH}, 13
    s_lshl_b32 s{sT1}, s{sP}, 10
    s_add_u32 s{sT0}, s{sT0}, s{sT1}
    v_add_u32 v{pA[0]}, s{sT0}, v{vD}
    s_mul_i32 s{sT0}, s{sP}, {32*320}
    s_mul_i32 s{sT1}, s{sNH}, 160
    s_add_u32 s{sT0}, s{sT0}, s{sT1}
    s_add_u32 s{sT0}, s{sT0}, {WOFF[0]}
    v_lshrrev_b32 v{t0}, 2, v{vI16}
    v_lshl_add_u32 v{t0}, v{vG}, 2, v{t0}
    v_mul_u32_u24 v{t0}, 320, v{t0}
    v_and_b32 v{t1}, 3, v{vI16}
    v_lshl_add_u32 v{t0}, v{t1}, 3, v{t0}
    v_add_u32 v{t0}, s{sT0}, v{t0}
    v_and_b32 v{t1}, 1, v{vG}
    v_lshlrev_b32 v{t1}, 5, v{t1}
    v_add_u32 v{t2}, v{t0}, v{t1}
    v_sub_u32 v{t3}, v{t0}, v{t1}
    """)]
    g += [L(f"s_cmp_eq_u32 s{sNH}, 0\ns_cselect_b64 s[{sMSK}:{sMSK+1}], -1, 0")]
    g += [[i] for i in L(f"""
    v_cndmask_b32 v{pW[0][0]}, v{t3}, v{t2}, s[{sMSK}:{sMSK+1}]
    v_cndmask_b32 v{pW[0][1]}, v{t2}, v{t3}, s[{sMSK}:{sMSK+1}]
    """)]
    for k in range(1, NSLOT):
        g += [[i] for i in L(f"""
        v_add_u32 v{pA[k]}, {AOFF[k]}, v{pA[0]}
        v_add_u32 v{pW[k][0]}, {WOFF[k]-WOFF[0]}, v{pW[0][0]}
        v_add_u32 v{pW[k][1]}, {WOFF[k]-WOFF[0]}, v{pW[0][1]}
        """)]
    g += [[i] for i in L(f"""
    s_lshl_b32 s{sT0}, s{sMT}, 9
    s_lshl_b32 s{sT1}, s{sMH}, 8
    s_add_u32 s{sT0}, s{sT0}, s{sT1}
    s_add_u32 s{sT0}, s{sT0}, {G_OFF + 8192:#x}
    v_lshlrev_b32 v{t0}, 2, v{vI16}
    """)]
    g += [[I(f"buffer_load_dword v{pOM[q]}, v{t0}, s[{SWS}:{SWS+3}], s{sT0} offen offset:{q*64} sc1")] for q in range(4)]
    return g

def p3_poll_early():
    return poll_load("C", Q, "ph")

def p3_pre(kp):
    a = [[i] for i in p3_scalars() + setup_dma(kp)]
    f = spread(a, 0, 18) + [(18, poll_check("C", Q, "ph", 3, f"PL2_{kp}"))]
    f += spread(st_dma(kp, 0) + st_dma(kp, 1), 19, 31) + spread(setup_rd(), 19, 32)
    return f

def ctx_poll_load():
    return poll_load("D", pPL, "p3")
def ctx_poll_check():
    return poll_check("D", pPL, "p3", 4, "PL3")

def reads(st):
    b = PSET[st % 2]; k = st % NSLOT
    a = lambda q: rd128(b + 4 * q, pA[k], q * 2048)
    w = lambda j: [rdtr(b + 16 + 4 * j, pW[k][j & 1], j * 32), rdtr(b + 16 + 4 * j + 2, pW[k][j & 1], j * 32 + 5120)]
    return w(0) + [a(0)] + w(1) + w(2) + w(3) + w(4) + [a(1), a(2), a(3)]

def mfmas(st):
    b = PSET[st % 2]
    return [mf(acc(j, q), b + 16 + 4 * j, b + 4 * q, 0 if st == 0 else None) for q in range(4) for j in range(5)]

BARPOS = 2
CHK = 4
def p3_main(kp):
    s = [waitvm("d0", lgkm=True), I("s_barrier"), stamp(26)]
    r = reads(0)
    d = st_dma(kp, 2) + st_dma(kp, 3)
    s += r[:3] + flat(d[:2]) + r[3:7] + flat(d[2:5]) + r[7:] + flat(d[5:])
    for st in range(NST):
        f = []
        w = [waitvm(f"d{st+1}", lgkm=True)] if st + 1 < NST else [I("s_waitcnt lgkmcnt(0)")]
        w += [I("s_barrier")]
        if st == 1 and kp == 0: w += signal(4, "SIG4", pT[1])
        if st == 7: w += [stamp(27)]
        f.append((BARPOS, w))
        if st + 1 < NST: f += spread(reads(st + 1), BARPOS, 18)
        dl = [st + NSLOT] if st + NSLOT < NST else []
        if kp == 1:
            if st + NSLOT >= 7 and st < CHK: dl = []
            if st == CHK: dl = list(range(7, CHK + NSLOT + 1))
            if st == CHK - 1: f.append((10, ctx_poll_load()))
            if st == CHK: f.append((BARPOS, ctx_poll_check()))
        if dl: f += spread(sum((st_dma(kp, x) for x in dl), []), BARPOS + 1, 17)
        if st == 7 or st == 6:
            for k in range(20):
                q, j = divmod(k, 5)
                ops = [I(f"v_mul_f32 v{acc(j,q)+r}, v{acc(j,q)+r}, v{pOM[q]}") for r in range(4)]
                if st == 6 and k < 3: f.append((17 + k, ops))
                if st == 7 and k >= 3: f.append((k - 3, ops))
        s += weave(mfmas(st), f)
    return s

def epilogue(kp):
    t0, t1, t2, t3 = pT
    X = PX
    s = [stamp(28)] + L(f"""
    s_mul_i32 s{sT0}, s{sW}, 10240
    v_add_u32 v{t0}, s{sT0}, v{vD}
    s_xor_b32 s{sT1}, s{sW}, 4
    s_mul_i32 s{sT1}, s{sT1}, 10240
    v_add_u32 v{t1}, s{sT1}, v{vD}
    s_lshl_b32 s{sPB}, s{sMT}, 2
    s_add_u32 s{sPB}, s{sPB}, s{sNT}
    s_mul_i32 s{sPB}, s{sPB}, {4*PART_WG}
    s_and_b32 s{sT0}, s{sW}, 3
    s_mul_i32 s{sT0}, s{sT0}, 3072
    s_add_u32 s{sPB}, s{sPB}, s{sT0}
    s_add_u32 s{sPB}, s{sPB}, {PART_OFF:#x}
    s_mov_b32 s{sMSK}, 0xfffffffe
    """) + srd(SOUT, sOUTP, SZ_OUT)
    snd = [2 * (1 - kp), 2 * (1 - kp) + 1]; own = [2 * kp, 2 * kp + 1]
    k = 0
    for q in snd:
        for j in range(5):
            s.append(I(f"ds_write_b128 v{t0}, v[{acc(j,q)}:{acc(j,q)+3}] offset:{k*1024}")); k += 1
    s += L("s_waitcnt lgkmcnt(0)\ns_barrier")
    s += [rd128(X + 4 * k, t1, k * 1024) for k in range(10)]
    k = 0
    for q in own:
        for j in range(5):
            s += [I(f"v_add_f32 v{acc(j,q)+r}, v{acc(j,q)+r}, v{X+4*k+r}") for r in range(4)]; k += 1
    A = s
    sends = []
    for q in own:
        y = X if q == own[0] else X + 12
        b = L(f"""
        s_sub_u32 s{sT0}, s{sC}, {q+1}
        s_and_b32 s{sT0}, s{sT0}, 3
        s_mul_i32 s{sT0}, s{sT0}, {4*3072}
        s_add_u32 s{sT0}, s{sT0}, s{sPB}
        s_add_u32 s{sT0}, s{sT0}, {q*PART_WG}
        """)
        b += pack2(y, acc(0, q), acc(1, q)) + pack2(y + 4, acc(2, q), acc(3, q))
        b += [I(f"v_min_u32 v{y+r}, s{sMSK}, v{y+r}") for r in range(8)]
        b += [I(f"v_min_u32 v{y+8+r}, s{sMSK}, v{acc(4,q)+r}") for r in range(4)]
        b += [I(f"buffer_store_dwordx4 v[{y+4*c}:{y+4*c+3}], v{vD}, s[{SWS}:{SWS+3}], s{sT0} offen offset:{c*1024} sc1") for c in range(3)]
        sends.append((q, b))
    mv = [I(f"v_mov_b32 v{acc(j,own[0])+r}, v{acc(j,own[1])+r}") for j in range(5) for r in range(4)]
    R = 24
    pre = L(f"""
    s_mul_i32 s{sT0}, s{sC}, {PART_WG}
    s_add_u32 s{sPB}, s{sPB}, s{sT0}
    s_add_u32 s{sT1}, s{sPB}, {4*3072}
    s_add_u32 s{sT2}, s{sPB}, {8*3072}
    s_mov_b32 s{sCNT}, 0
    s_lshl_b32 s{sT0}, s{sMT}, 7
    s_lshl_b32 s{so2}, s{sMH}, 6
    s_add_u32 s{sT0}, s{sT0}, s{so2}
    s_lshl_b32 s{so2}, s{sC}, 4
    s_add_u32 s{sT0}, s{sT0}, s{so2}
    s_mul_i32 s{sT0}, s{sT0}, 1280
    s_mul_i32 s{so2}, s{sNT}, 320
    s_add_u32 s{sT0}, s{sT0}, s{so2}
    s_mul_i32 s{so2}, s{sNH}, 160
    s_add_u32 s{so2}, s{sT0}, s{so2}
    v_mul_u32_u24 v{t0}, 1280, v{vI16}
    v_and_b32 v{t1}, 1, v{vG}
    v_lshlrev_b32 v{t1}, 5, v{t1}
    v_lshrrev_b32 v{t2}, 1, v{vG}
    v_lshl_add_u32 v{t1}, v{t2}, 4, v{t1}
    v_add_u32 v{t1}, v{t0}, v{t1}
    v_lshl_add_u32 v{t0}, v{vG}, 3, v{t0}
    """)
    poll = []
    for si, so in enumerate((sPB, sT1, sT2)):
        poll += [I(f"buffer_load_dwordx4 v[{R+12*si+4*c}:{R+12*si+4*c+3}], v{vD}, s[{SWS}:{SWS+3}], s{so} offen offset:{c*1024} sc1") for c in range(3)]
    poll += L(f"s_add_u32 s{sCNT}, s{sCNT}, 1\ns_waitcnt vmcnt(0)")
    poll += [I(f"v_max3_u32 v{t2}, v{R}, v{R+1}, v{R+2}")] + [I(f"v_max3_u32 v{t2}, v{t2}, v{R+k}, v{R+k+1}") for k in range(3, 35, 2)] + [I(f"v_max_u32 v{t2}, v{t2}, v{R+35}")]
    poll += L(f"""
    v_cmp_eq_u32 vcc, -1, v{t2}
    s_cmp_ge_u32 s{sCNT}, 0x20000
    """)
    o = own[0]
    fn = [stamp(29)] + L(f"s_mov_b32 s{sMSK}, 0xffff0000")
    for si in range(3):
        for c in range(2):
            for h in range(4):
                r = R + 12 * si + 4 * c + h
                d = acc(2 * c + (h >> 1), o) + 2 * (h & 1)
                fn += L(f"""
                v_lshlrev_b32 v{t2}, 16, v{r}
                v_and_b32 v{t3}, s{sMSK}, v{r}
                v_add_f32 v{d}, v{d}, v{t2}
                v_add_f32 v{d+1}, v{d+1}, v{t3}
                """)
        fn += [I(f"v_add_f32 v{acc(4,o)+r}, v{acc(4,o)+r}, v{R+12*si+8+r}") for r in range(4)]
    y = X
    fn += pack2(y, acc(0, o), acc(1, o)) + pack2(y + 4, acc(2, o), acc(3, o)) + [cvtpk(y + 8, acc(4, o), acc(4, o) + 1), cvtpk(y + 9, acc(4, o) + 2, acc(4, o) + 3)]
    fn += L(f"""
    s_nop 1
    v_permlane16_swap_b32 v{y}, v{y+2}
    v_permlane16_swap_b32 v{y+1}, v{y+3}
    v_permlane16_swap_b32 v{y+4}, v{y+6}
    v_permlane16_swap_b32 v{y+5}, v{y+7}
    s_nop 1
    buffer_store_dwordx4 v[{y}:{y+3}], v{t1}, s[{SOUT}:{SOUT+3}], s{so2} offen
    buffer_store_dwordx4 v[{y+4}:{y+7}], v{t1}, s[{SOUT}:{SOUT+3}], s{so2} offen offset:64
    buffer_store_dwordx2 v[{y+8}:{y+9}], v{t0}, s[{SOUT}:{SOUT+3}], s{so2} offen offset:128
    """)
    return A, sends, mv, pre, poll, fn
```

```python
import sys
from fz3 import *
import fz1
HDR = open("gated_mix__compressed_kv_cla__geglu_ffn__prompt.s.ref").read().split("; Override")[0]
NAME = "gated_mix__compressed_kv_cla__geglu_ffn__prompt_kernel"

def emit():
    del STUBS[:]
    s0 = setup()
    pro1 = flat(kv_dma(0)) + flat(kv_dma(1)) + setup_late() + kv_addr() + [waitvm("kv0"), I("s_barrier"), stamp(1)] + kv_reads(0, 0, 0)
    M1, M2, M3 = I("; @@A"), I("; @@B"), I("; @@C")
    front = {}
    for kind in range(3):
        grp = 1 if kind == 1 else 0
        extra = {7: [(40, att_scalars())], 9: spread(att_setup(grp), 21, 47)}
        body = pro1 + [M1] + kv_part(kind) + [M2] + qg_part(kind, k_dma("k0"), v_dma("v0") + k_dma("k1"), extra)
        body += [I("s_nop 1"), stamp(20)] + (geglu() if kind == 0 else qepi() if kind == 1 else [])
        body += [waitvm("v0", lgkm=True), I("s_barrier"), stamp(21)] + [M3]
        body = resolve_vm(body)
        body, q = add_lgkm(body, slack=1)
        front[kind] = (body, q)
    q0 = front[0][1]
    assert qsig(q0) == qsig(front[1][1]) == qsig(front[2][1])
    W = lambda seq, q: add_lgkm(seq, q, slack=1)
    PR = pro(); PR["A"], q = W(PR["A"], q0); PR["B"], qpro = W(PR["B"], q)
    t = it("O1"); _, q = W(t["A"], qpro); _, qloop = W(t["B"], q)
    assert len(qloop) == NPRE and qsig(qpro) == qsig(qloop)[NPRE - len(qpro):], (qsig(qpro), qsig(qloop))
    IT = {}
    for n in ("E1", "O1", "E1s", "O1s", "I0", "I1"):
        t = it(n); t["A"], q = W(t["A"], qloop); t["B"], q = W(t["B"], q)
        assert qsig(q) == qsig(qloop), n
        IT[n] = t
    BE = bepi()
    RA = {"RARE0": rare(0, True, "RARE0"), "RARE1": rare(1, True, "RARE1"), "RARE1B": rare(1, False, "RARE1B")}
    back = {}
    for p in range(2):
        F = fin(p, p3_poll_early(), p3_pre(p))
        A, sends, mv, pre, poll, fn = epilogue(p)
        MK = I("; @@D")
        lin = resolve_vm(F["A"] + [MK] + F["B"] + p3_main(p) + A)
        lin, q = W(lin, qloop)
        assert not q
        k = lin.index(MK)
        F["A"], F["B"] = lin[:k], lin[k + 1:]
        back[p] = (F, sends, mv, pre, poll, fn)
    seg = lambda t: t["A"] + t["mid"] + t["B"]
    def segx(t, r=False, m=False, first=False):
        out = list(t["A"])
        for i in t["mid"]:
            out.append(i)
            if r and "vccnz" in i.t: out += RA[t.get("rname", "RARE0")]
            if m and "scc1" in i.t: out += t["mstub"]
        if not first: return out + t["B"]
        for i in t["B"]:
            out.append(i)
            if i.kind == "br" and "_F" in i.t: out += t["siglin"]
        return out
    for kind in range(3):
        p = 1 if kind == 1 else 0
        F, sends, mv, pre, poll, fn = back[p]
        tails = [sends[0][1] + sends[1][1] + mv + pre + poll + poll + fn, sends[1][1] + pre + poll + fn, sends[0][1] + mv + pre + poll + fn]
        hd = s0 + front[kind][0]
        for v, (r, m) in enumerate(((False, False), (True, False), (False, True), (True, True))):
            X = lambda n, first=False: segx(IT[n], r, m, first)
            path = hd + segx(PR, False, m) + X("E1", True) + X("O1") + X("E1") + X("O1")
            if p: path += X("E1s") + X("O1s") + BE
            path += X("I0") + X("I1") + X("I0") + X("I1") + segx(F, r) + tails[v % 3]
            verify(path, f"path kind{kind} v{v}")
            path = hd + segx(PR, False, m) + (X("E1s", True) + X("O1s") + BE if p else X("E1", True) + X("O1")) + segx(F, r)[:400]
            verify(path, f"path2 kind{kind} v{v}")
    b0 = front[0][0]
    a1 = b0.index(M1)
    part = lambda kind, a, b: front[kind][0][front[kind][0].index(a) + 1: front[kind][0].index(b)]
    for kind in (1, 2):
        assert [i.t for i in front[kind][0][:a1]] == [i.t for i in b0[:a1]]
        assert [i.t for i in front[kind][0][front[kind][0].index(M3):]] == [i.t for i in b0[b0.index(M3):]]
    s = L("s_cmp_lt_u32 s2, 256\ns_cbranch_scc1 K_GO\ns_endpgm\nK_GO:") + s0[2:] + b0[:a1] + L(f"s_cmp_ge_u32 s{sW}, 4\ns_cbranch_scc1 K_V\ns_cmp_eq_u32 s{sVALID}, 0\ns_cbranch_scc1 K_G")
    s += part(0, M1, M3) + L("s_branch K_ATT\nK_G:") + part(2, M1, M3) + L("s_branch K_ATT\nK_V:") + part(1, M1, M3)
    s += L("K_ATT:") + b0[b0.index(M3) + 1:] + seg(PR) + L("s_cbranch_scc1 K_E1S\n.p2align 6\nK_L1:")
    s += seg(IT["E1"]) + seg(IT["O1"]) + L(f"s_cbranch_scc0 K_L1\ns_cmp_eq_u32 s{sP}, 0\ns_cbranch_scc1 K_PH2\nK_E1S:")
    s += seg(IT["E1s"]) + seg(IT["O1s"]) + BE
    s += L(f"K_PH2:\ns_cmp_eq_u32 s{sC2}, 0\ns_cbranch_scc1 K_FIN\n.p2align 6\nK_L2:") + seg(IT["I0"]) + seg(IT["I1"]) + L("s_cbranch_scc0 K_L2")
    s += L(f"K_FIN:\ns_cmp_eq_u32 s{sP}, 1\ns_cbranch_scc1 K_FIN1")
    stubs = PR["mstub"] + sum((IT[n]["rstub"] + IT[n]["mstub"] + IT[n]["sig"] for n in IT), []) + sum(RA.values(), [])
    for p in range(2):
        F, sends, mv, pre, poll, fn = back[p]
        c = seg(F)
        for q, b in sends:
            c += L(f"s_cmp_eq_u32 s{sC}, {q}\ns_cbranch_scc1 P3_S{q}") + b + L(f"P3_S{q}:")
        c += L(f"""
        s_lshr_b32 s{sT0}, s{sC}, 1
        s_cmp_lg_u32 s{sT0}, {p}
        s_cbranch_scc1 K_END
        s_bitcmp0_b32 s{sC}, 0
        s_cbranch_scc1 P3_R{p}
        """) + mv + L(f"P3_R{p}:") + pre + L(f"P3_POLL{p}:") + poll + L(f"""
        s_cbranch_scc1 P3_GO{p}
        s_cbranch_vccnz P3_POLL{p}
        P3_GO{p}:
        """) + fn + L("s_branch K_END")
        s += c
        if p == 0: s += stubs + back[0][0]["rstub"] + back[1][0]["rstub"] + sum(STUBS, []) + L("K_FIN1:")
    s += L("K_END:")
    return s

def main(out, opts):
    dg = "diag" in opts
    s = diag_expand(emit(), 0, dg)
    s = [i for i in s if not i.t.startswith("; @@")]
    print(len(s), "instructions")
    body = kernel(NAME, s)
    head = "; @launch grid=(256,1,1) block=(512,1,1) lds=163840" if "single" in opts else f"; @launch kernel={NAME} grid=(256,1,1) block=(512,1,1) lds=163840"
    open(out, "w").write(HDR + head + '\n.amdgcn_target "amdgcn-amd-amdhsa--gfx950"\n' + body)
if __name__ == "__main__":
    main(sys.argv[1], sys.argv[2:])
```

```python
from ag import *

import os
OPT = set(os.environ.get("OPT", "").split(","))
WS_BASE = (176 << 20) if "hi" in OPT else 0
KF_OFF = WS_BASE
VF_OFF = 16 << 20
AF_OFF = WS_BASE + (32 << 20)
G_OFF = WS_BASE + (56 << 20)
FLAG_OFF = WS_BASE + (57 << 20)
PART_OFF = WS_BASE + (64 << 20)
KVSC = "" if "kvplain" in OPT else " sc1"
WS_BYTES = 0x10000000
NSTG = 91
AF_MT = NSTG * 16384

A_X, A_C, A_WQ, A_WUK, A_WUV, A_WO, A_BX, A_WG, A_WU, A_WD, A_GW, A_OUT, A_DBG, A_WS = [8 * i for i in range(14)]
SZ_X, SZ_C, SZ_WQ, SZ_WUK, SZ_WO, SZ_WG, SZ_WD, SZ_GW, SZ_OUT = 2621440, 2097152, 5242880, 4194304, 5242880, 2211840, 2211840, 1280, 2621440

def srd(d, p, size):
    return L(f"""
    s_mov_b32 s{d}, s{p}
    s_and_b32 s{d+1}, s{p+1}, 0xffff
    s_mov_b32 s{d+2}, {size:#x}
    s_mov_b32 s{d+3}, 0x20000
    """)

def mf(d, a, b, c=None):
    cs = "0" if c == 0 else (f"v[{d}:{d+3}]" if c is None else f"v[{c}:{c+3}]")
    return I(f"v_mfma_f32_16x16x32_bf16 v[{d}:{d+3}], v[{a}:{a+3}], v[{b}:{b+3}], {cs}")

def rd128(d, a, off):
    assert 0 <= off < 65536, off
    return I(f"ds_read_b128 v[{d}:{d+3}], v{a} offset:{off}")

def rdtr(d, a, off):
    assert 0 <= off < 65536, off
    return I(f"ds_read_b64_tr_b16 v[{d}:{d+1}], v{a} offset:{off}")

def dma(v, s, soff, off, tag=None, extra=""):
    i = I(f"buffer_load_dwordx4 v{v}, s[{s}:{s+3}], s{soff} offen offset:{off}{extra} lds" + (f" ; @{tag}" if tag else ""))
    return i

def waitvm(tag, lgkm=False):
    return I(f"s_waitcnt vmcnt(@{tag})" + (" lgkmcnt(0)" if lgkm else ""))

import re as _re
_lab = [0]
def guarded(variant, body):
    _lab[0] += 1
    return [I(f"s_cbranch_vcc{'z' if variant else 'nz'} VR{_lab[0]}")] + body + [I(f"VR{_lab[0]}:")]

def variant(seq, v):
    out = []; skip = None
    for i in seq:
        if skip:
            if i.t == skip + ":": skip = None
            continue
        if i.kind == "br" and " VR" in i.t:
            taken = (i.op == "s_cbranch_vccz") == (v == 0)
            if taken: skip = i.t.split()[1]
        out.append(i)
    return out

def resolve_vm(seq):
    out = []
    vm = [[], []]
    only = None
    for i in seq:
        if i.kind == "br" and " VR" in i.t:
            only = (1 if i.op == "s_cbranch_vccz" else 0, i.t.split()[1])
        elif only and i.t == only[1] + ":":
            only = None
        if i.kind == "wait" and "@" in i.t.split(";")[0]:
            assert only is None
            tag = _re.search(r"vmcnt\(@(\w+)\)", i.t).group(1)
            ns = []
            for v in range(2):
                idx = [k for k, t in enumerate(vm[v]) if t == tag]
                assert idx, f"no vmem op tagged {tag}"
                ns.append(len(vm[v]) - 1 - idx[-1])
            assert max(ns) <= 63, (tag, ns)
            out.append(I(i.t.replace(f"@{tag}", str(max(ns)))))
            if ns[0] != ns[1]:
                out += guarded(0 if ns[0] < ns[1] else 1, [I(f"s_waitcnt vmcnt({min(ns)})")])
            continue
        elif i.kind in ("dma", "vld", "vst", "vat"):
            m = _re.search(r";\s*@(\w+)", i.t)
            if m and m.group(1) == "opt":
                out.append(i); continue
            for v in range(2):
                if only is None or only[0] == v: vm[v].append(m.group(1) if m else None)
        out.append(i)
    return out

def cvtpk(d, a, b):
    return I(f"v_cvt_pk_bf16_f32 v{d}, v{a}, v{b}")

def pack2(dst, x, y):
    return [cvtpk(dst, x, x + 1), cvtpk(dst + 1, x + 2, x + 3), cvtpk(dst + 2, y, y + 1), cvtpk(dst + 3, y + 2, y + 3)]

def verify(path, name):
    errs = []
    for v in range(2):
        p = variant(path, v)
        errs += check_hazards(p, name) + check_waits(p, name)
        if len(p) == len(path): break
    for e in errs[:40]: print(e)
    assert not errs, f"{len(errs)} problems in {name}"

DIAG_OFF = 128 << 20
def stamp(k, dyn=None):
    return I(f"; @@STAMP {k}" + (f" {dyn}" if dyn is not None else ""))

def dbgt_expand(seq):
    sel = os.environ["STAMPS0"].split(",")
    out = []
    for i in seq:
        if i.t.startswith("; @@STAMP"):
            k = i.t.split()[2]
            if k in sel:
                out += L(f"""
                s_memrealtime s[100:101]
                s_waitcnt lgkmcnt(0)
                v_writelane_b32 v0, s100, {2 + sel.index(k)}
                """)
        else: out.append(i)
    n = 2 + len(sel)
    assert n <= 15
    out += L(f"""
    s_cmp_lg_u32 s3, 0
    s_cbranch_scc1 DBGT_END
    s_waitcnt vmcnt(0)
    s_memrealtime s[100:101]
    s_waitcnt lgkmcnt(0)
    v_writelane_b32 v0, s100, {n}
    s_lshr_b32 s24, s38, 3
    s_lshl_b32 s25, s59, 29
    s_or_b32 s24, s24, s25
    v_subrev_u32 v0, s24, v0
    v_max_i32 v0, 0, v0
    v_mbcnt_lo_u32_b32 v1, -1, 0
    v_mbcnt_hi_u32_b32 v1, -1, v1
    v_lshlrev_b32 v1, 2, v1
    s_mov_b64 exec, {((1 << (n + 1)) - 1) & ~3:#x}
    buffer_atomic_umax v0, v1, s[12:15], 0 offen
    DBGT_END:
    """)
    return out

def diag_expand(seq, kidx, on):
    if "dbgt" in OPT: return dbgt_expand(seq)
    out = []
    for i in seq:
        if i.t.startswith("; @@STAMP"):
            if on:
                k = int(i.t.split()[2])
                import os
                sel = os.environ.get(f"STAMPS{kidx}")
                if sel and str(k) not in sel.split(","): continue
                if len(i.t.split()) > 3:
                    d = int(i.t.split()[3])
                    out += L(f"""
                    s_lshl_b32 m0, s{d}, 3
                    s_add_u32 m0, m0, {2*k}
                    s_memtime s[100:101]
                    s_waitcnt lgkmcnt(0)
                    v_writelane_b32 v0, s100, m0
                    s_add_u32 m0, m0, 1
                    s_memrealtime s[100:101]
                    s_waitcnt lgkmcnt(0)
                    v_writelane_b32 v0, s100, m0
                    """)
                    continue
                out += L(f"""
                s_memtime s[100:101]
                s_waitcnt lgkmcnt(0)
                v_writelane_b32 v0, s100, {2*k}
                s_memrealtime s[100:101]
                s_waitcnt lgkmcnt(0)
                v_writelane_b32 v0, s100, {2*k+1}
                """)
        else:
            out.append(i)
    if on:
        out += L(f"""
        s_cmp_ge_u32 s2, 256
        s_cbranch_scc1 DIAG_END{kidx}
        s_memtime s[100:101]
        s_waitcnt lgkmcnt(0)
        v_writelane_b32 v0, s100, 60
        s_memrealtime s[100:101]
        s_waitcnt lgkmcnt(0)
        v_writelane_b32 v0, s100, 61
        s_waitcnt vmcnt(0)
        s_memtime s[100:101]
        s_waitcnt lgkmcnt(0)
        v_writelane_b32 v0, s100, 62
        s_memrealtime s[100:101]
        s_waitcnt lgkmcnt(0)
        v_writelane_b32 v0, s100, 63
        s_load_dwordx2 s[8:9], s[0:1], {A_WS}
        s_waitcnt lgkmcnt(0)
        s_and_b32 s9, s9, 0xffff
        s_mov_b32 s10, {WS_BYTES:#x}
        s_mov_b32 s11, 0x20000
        s_lshl_b32 s12, s2, 3
        s_add_u32 s12, s12, s3
        s_add_u32 s12, s12, {kidx*2048}
        s_lshl_b32 s12, s12, 8
        s_add_u32 s12, s12, {DIAG_OFF:#x}
        v_mbcnt_lo_u32_b32 v1, -1, 0
        v_mbcnt_hi_u32_b32 v1, -1, v1
        v_lshlrev_b32 v1, 2, v1
        buffer_store_dword v0, v1, s[8:11], s12 offen
        DIAG_END{kidx}:
        """)
    return out
```

```python
from ag import *

import os
OPT = set(os.environ.get("OPT", "").split(","))
WS_BASE = (176 << 20) if "hi" in OPT else 0
KF_OFF = WS_BASE
VF_OFF = 16 << 20
AF_OFF = WS_BASE + (32 << 20)
G_OFF = WS_BASE + (56 << 20)
FLAG_OFF = WS_BASE + (57 << 20)
STASH_OFF = WS_BASE + (58 << 20)
PART_OFF = WS_BASE + (64 << 20)
KVSC = "" if "kvplain" in OPT else " sc1"
WS_BYTES = 0x10000000
NSTG = 91
AF_MT = NSTG * 16384

A_X, A_C, A_WQ, A_WUK, A_WUV, A_WO, A_BX, A_WG, A_WU, A_WD, A_GW, A_OUT, A_DBG, A_WS = [8 * i for i in range(14)]
SZ_X, SZ_C, SZ_WQ, SZ_WUK, SZ_WO, SZ_WG, SZ_WD, SZ_GW, SZ_OUT = 2621440, 2097152, 5242880, 4194304, 5242880, 2211840, 2211840, 1280, 2621440

def srd(d, p, size):
    return L(f"""
    s_mov_b32 s{d}, s{p}
    s_and_b32 s{d+1}, s{p+1}, 0xffff
    s_mov_b32 s{d+2}, {size:#x}
    s_mov_b32 s{d+3}, 0x20000
    """)

def mf(d, a, b, c=None):
    cs = "0" if c == 0 else (f"v[{d}:{d+3}]" if c is None else f"v[{c}:{c+3}]")
    return I(f"v_mfma_f32_16x16x32_bf16 v[{d}:{d+3}], v[{a}:{a+3}], v[{b}:{b+3}], {cs}")

def rd128(d, a, off):
    assert 0 <= off < 65536, off
    return I(f"ds_read_b128 v[{d}:{d+3}], v{a} offset:{off}")

def rdtr(d, a, off):
    assert 0 <= off < 65536, off
    return I(f"ds_read_b64_tr_b16 v[{d}:{d+1}], v{a} offset:{off}")

def dma(v, s, soff, off, tag=None, extra=""):
    i = I(f"buffer_load_dwordx4 v{v}, s[{s}:{s+3}], s{soff} offen offset:{off}{extra} lds" + (f" ; @{tag}" if tag else ""))
    return i

def waitvm(tag, lgkm=False):
    return I(f"s_waitcnt vmcnt(@{tag})" + (" lgkmcnt(0)" if lgkm else ""))

import re as _re
_lab = [0]
def guarded(variant, body):
    _lab[0] += 1
    return [I(f"s_cbranch_vcc{'z' if variant else 'nz'} VR{_lab[0]}")] + body + [I(f"VR{_lab[0]}:")]

def variant(seq, v):
    out = []; skip = None
    for i in seq:
        if skip:
            if i.t == skip + ":": skip = None
            continue
        if i.kind == "br" and " VR" in i.t:
            taken = (i.op == "s_cbranch_vccz") == (v == 0)
            if taken: skip = i.t.split()[1]
        out.append(i)
    return out

def resolve_vm(seq):
    out = []
    vm = [[], []]
    only = None
    for i in seq:
        if i.kind == "br" and " VR" in i.t:
            only = (1 if i.op == "s_cbranch_vccz" else 0, i.t.split()[1])
        elif only and i.t == only[1] + ":":
            only = None
        if i.kind == "wait" and "@" in i.t.split(";")[0]:
            assert only is None
            tag = _re.search(r"vmcnt\(@(\w+)\)", i.t).group(1)
            ns = []
            for v in range(2):
                idx = [k for k, t in enumerate(vm[v]) if t == tag]
                assert idx, f"no vmem op tagged {tag}"
                ns.append(len(vm[v]) - 1 - idx[-1])
            assert max(ns) <= 63, (tag, ns)
            out.append(I(i.t.replace(f"@{tag}", str(max(ns)))))
            if ns[0] != ns[1]:
                out += guarded(0 if ns[0] < ns[1] else 1, [I(f"s_waitcnt vmcnt({min(ns)})")])
            continue
        elif i.kind in ("dma", "vld", "vst", "vat"):
            m = _re.search(r";\s*@(\w+)", i.t)
            if m and m.group(1) == "opt":
                out.append(i); continue
            for v in range(2):
                if only is None or only[0] == v: vm[v].append(m.group(1) if m else None)
        out.append(i)
    return out

def cvtpk(d, a, b):
    return I(f"v_cvt_pk_bf16_f32 v{d}, v{a}, v{b}")

def pack2(dst, x, y):
    return [cvtpk(dst, x, x + 1), cvtpk(dst + 1, x + 2, x + 3), cvtpk(dst + 2, y, y + 1), cvtpk(dst + 3, y + 2, y + 3)]

def verify(path, name):
    errs = []
    for v in range(2):
        p = variant(path, v)
        errs += check_hazards(p, name) + check_waits(p, name)
        if len(p) == len(path): break
    for e in errs[:40]: print(e)
    assert not errs, f"{len(errs)} problems in {name}"

DIAG_OFF = 128 << 20
def stamp(k, dyn=None):
    return I(f"; @@STAMP {k}" + (f" {dyn}" if dyn is not None else ""))

def dbgt_expand(seq):
    sel = os.environ["STAMPS0"].split(",")
    out = []
    for i in seq:
        if i.t.startswith("; @@STAMP"):
            k = i.t.split()[2]
            if k in sel:
                out += L(f"""
                s_memrealtime s[100:101]
                s_waitcnt lgkmcnt(0)
                v_writelane_b32 v0, s100, {2 + sel.index(k)}
                """)
        else: out.append(i)
    n = 2 + len(sel)
    assert n <= 15
    out += L(f"""
    s_cmp_lg_u32 s3, 0
    s_cbranch_scc1 DBGT_END
    s_waitcnt vmcnt(0)
    s_memrealtime s[100:101]
    s_waitcnt lgkmcnt(0)
    v_writelane_b32 v0, s100, {n}
    v_lshlrev_b32 v0, 3, v0
    v_subrev_u32 v0, s38, v0
    v_lshlrev_b32 v0, 1, v0
    v_ashrrev_i32 v0, 4, v0
    v_max_i32 v0, 0, v0
    v_mbcnt_lo_u32_b32 v1, -1, 0
    v_mbcnt_hi_u32_b32 v1, -1, v1
    v_lshlrev_b32 v1, 2, v1
    s_mov_b64 exec, {((1 << (n + 1)) - 1) & ~3:#x}
    buffer_atomic_umax v0, v1, s[12:15], 0 offen
    DBGT_END:
    """)
    return out

def diag_expand(seq, kidx, on):
    if "dbgt" in OPT: return dbgt_expand(seq)
    out = []
    for i in seq:
        if i.t.startswith("; @@STAMP"):
            if on:
                k = int(i.t.split()[2])
                import os
                sel = os.environ.get(f"STAMPS{kidx}")
                if sel and str(k) not in sel.split(","): continue
                if sel: k = sel.split(",").index(str(k))
                if len(i.t.split()) > 3:
                    d = int(i.t.split()[3])
                    out += L(f"""
                    s_lshl_b32 m0, s{d}, 3
                    s_add_u32 m0, m0, {2*k}
                    s_memtime s[100:101]
                    s_waitcnt lgkmcnt(0)
                    v_writelane_b32 v0, s100, m0
                    s_add_u32 m0, m0, 1
                    s_memrealtime s[100:101]
                    s_waitcnt lgkmcnt(0)
                    v_writelane_b32 v0, s100, m0
                    """)
                    continue
                out += L(f"""
                s_memtime s[100:101]
                s_waitcnt lgkmcnt(0)
                v_writelane_b32 v0, s100, {2*k}
                s_memrealtime s[100:101]
                s_waitcnt lgkmcnt(0)
                v_writelane_b32 v0, s100, {2*k+1}
                """)
        else:
            out.append(i)
    if on:
        out += L(f"""
        s_cmp_ge_u32 s2, 256
        s_cbranch_scc1 DIAG_END{kidx}
        s_memtime s[100:101]
        s_waitcnt lgkmcnt(0)
        v_writelane_b32 v0, s100, 60
        s_memrealtime s[100:101]
        s_waitcnt lgkmcnt(0)
        v_writelane_b32 v0, s100, 61
        s_waitcnt vmcnt(0)
        s_memtime s[100:101]
        s_waitcnt lgkmcnt(0)
        v_writelane_b32 v0, s100, 62
        s_memrealtime s[100:101]
        s_waitcnt lgkmcnt(0)
        v_writelane_b32 v0, s100, 63
        s_load_dwordx2 s[8:9], s[0:1], {A_WS}
        s_waitcnt lgkmcnt(0)
        s_and_b32 s9, s9, 0xffff
        s_mov_b32 s10, {WS_BYTES:#x}
        s_mov_b32 s11, 0x20000
        s_lshl_b32 s12, s2, 3
        s_add_u32 s12, s12, s3
        s_add_u32 s12, s12, {kidx*2048}
        s_lshl_b32 s12, s12, 8
        s_add_u32 s12, s12, {DIAG_OFF:#x}
        v_mbcnt_lo_u32_b32 v1, -1, 0
        v_mbcnt_hi_u32_b32 v1, -1, v1
        v_lshlrev_b32 v1, 2, v1
        buffer_store_dword v0, v1, s[8:11], s12 offen
        DIAG_END{kidx}:
        """)
    return out
```

```python
from common import *
import struct
def f2h(x):
    return "0x%08x" % struct.unpack("<I", struct.pack("<f", x))[0]

sW, sXCD, sSLOT, sH, sPI = 3, 4, 5, 6, 7
SWS, SDBG, SWD, SWO = 8, 12, 16, 20
sT0, sT1, sT2, sT3 = 24, 25, 26, 27
sP = 28
sFLAG = 29
sPC = 30
soC, soW, soX, soG = 32, 33, 34, 35
mA, mWk = 36, 37
sFB, sST, sVALID = 39, 40, 31
sOUTP = 42
sGI = 41
sNL = 38
sCLK = 44
SX, SC, SW1, SW2, SGW = 60, 64, 68, 72, 76
P = 80
vLane, vI16, vG = 1, 2, 3
vMAP = 1
vDC = [5, 6, 7, 30]
vDW = [8, 9, 10, 11]
vRA = [[12, 13], [14, 15]]
vRW = [[16, 17, 18, 19], [20, 21, 22, 23]]
vDX = [24, 25, 26, 27]
vPOLL, vTMP = 28, 29
vD = 4
vT = 31
SET = [32, 80]
ACC = 128
PART_WG = 36864
QS = 131072
PFV = 92

def setup():
    s = L(f"""
    s_cmp_ge_u32 s2, 256
    s_cbranch_scc1 K_END
    s_load_dwordx4 s[{P}:{P+3}], s[0:1], {A_X}
    s_load_dwordx4 s[{P+4}:{P+7}], s[0:1], {A_WUK}
    s_load_dwordx2 s[{P+8}:{P+9}], s[0:1], {A_WS}
    s_load_dwordx2 s[{P+10}:{P+11}], s[0:1], {A_WQ}
    s_load_dwordx4 s[{P+12}:{P+15}], s[0:1], {A_WG}
    s_load_dwordx4 s[{P+16}:{P+19}], s[0:1], {A_WD}
    s_load_dwordx2 s[{SDBG}:{SDBG+1}], s[0:1], {A_DBG}
    s_load_dwordx2 s[{SWO}:{SWO+1}], s[0:1], {A_WO}
    s_load_dwordx2 s[{sOUTP}:{sOUTP+1}], s[0:1], {A_OUT}
    s_memrealtime s[{sCLK}:{sCLK+1}]
    v_lshrrev_b32 v{vT}, 6, v0
    v_and_b32 v{vLane}, 63, v0
    v_readfirstlane_b32 s{sW}, v{vT}
    v_and_b32 v{vI16}, 15, v0
    v_lshrrev_b32 v{vG}, 4, v{vLane}
    v_lshlrev_b32 v{vD}, 4, v{vLane}
    ; @@STAMP 0
    s_and_b32 s{sXCD}, s2, 7
    s_lshr_b32 s{sSLOT}, s2, 3
    s_and_b32 s{sT0}, s{sSLOT}, 3
    s_lshl_b32 s{sH}, s{sXCD}, 2
    s_add_u32 s{sH}, s{sH}, s{sT0}
    s_lshr_b32 s{sPI}, s{sSLOT}, 2
    s_lshr_b32 s{sP}, s{sW}, 2
    s_lshl_b32 s{mA}, s{sW}, 12
    s_add_u32 s{mWk}, s{mA}, 32768
    """)
    t0, t1, t2, t3 = 32, 33, 34, 35
    s += L(f"""
    v_lshrrev_b32 v{t0}, 3, v{vLane}
    v_and_b32 v{t1}, 7, v{vLane}
    """)
    for n in range(4):
        s += L(f"""
        v_add_u32 v{t2}, {4*n}, v{vG}
        v_and_b32 v{t2}, 7, v{t2}
        v_xor_b32 v{t2}, v{t2}, v{t1}
        v_lshlrev_b32 v{t2}, 4, v{t2}
        v_add_u32 v{t3}, {8*n}, v{t0}
        v_lshl_add_u32 v{vDC[n]}, v{t3}, 10, v{t2}
        v_subrev_u32 v{vDC[n]}, {n*1024}, v{vDC[n]}
        v_mul_u32_u24 v{t3}, 1280, v{t3}
        v_add_u32 v{vDX[n]}, v{t3}, v{t2}
        v_subrev_u32 v{vDX[n]}, {n*1024}, v{vDX[n]}
        """)
    for n in range(4):
        s += L(f"""
        v_lshrrev_b32 v{t2}, 1, v{vI16}
        v_xor_b32 v{t2}, v{t2}, v{vG}
        v_xor_b32 v{t2}, {((n>>1)&1)<<2}, v{t2}
        v_lshlrev_b32 v{t2}, 5, v{t2}
        v_and_b32 v{t3}, 1, v{vLane}
        v_lshl_add_u32 v{t2}, v{t3}, 4, v{t2}
        v_add_u32 v{t3}, {4*n}, v{vG}
        v_lshl_add_u32 v{vDW[n]}, v{t3}, 13, v{t2}
        v_subrev_u32 v{vDW[n]}, {n*1024}, v{vDW[n]}
        """)
    s += L(f"""
    s_lshl_b32 s{sT0}, s{sPI}, 8
    s_lshl_b32 s{sT1}, s{sW}, 5
    s_add_u32 s{sT0}, s{sT0}, s{sT1}
    s_lshl_b32 s{soC}, s{sT0}, 10
    s_and_b32 s{sT0}, s{sW}, 3
    s_lshl_b32 s{soW}, s{sT0}, 17
    s_lshl_b32 s{sT1}, s{sH}, 8
    s_add_u32 s{soW}, s{soW}, s{sT1}
    s_waitcnt lgkmcnt(0)
    """)
    s += srd(SC, P + 2, SZ_C)
    s += L(f"""
    s_cmp_lt_u32 s{sW}, 4
    s_cselect_b32 s{P+4}, s{P+4}, s{P+6}
    s_cselect_b32 s{P+5}, s{P+5}, s{P+7}
    """) + srd(SW1, P + 4, SZ_WUK)
    return s

def setup_late():
    s = srd(SX, P, SZ_X) + srd(SWS, P + 8, WS_BYTES) + srd(SGW, P + 18, SZ_GW) + srd(SWD, P + 16, SZ_WD)
    s += L(f"""
    s_and_b32 s{SDBG+1}, s{SDBG+1}, 0xffff
    s_mov_b32 s{SDBG+2}, 256
    s_mov_b32 s{SDBG+3}, 0x20000
    s_and_b32 s{SWO+1}, s{SWO+1}, 0xffff
    s_mov_b32 s{SWO+2}, {SZ_WO:#x}
    s_mov_b32 s{SWO+3}, 0x20000
    s_lshl_b32 s{sFLAG}, s{sH}, 3
    s_add_u32 s{sFLAG}, s{sFLAG}, s{sPI}
    s_lshl_b32 s{sFLAG}, s{sFLAG}, 8
    s_add_u32 s{sFLAG}, s{sFLAG}, {FLAG_OFF:#x}
    s_and_b32 s{sT0}, s{sSLOT}, 3
    s_lshl_b32 s{sFB}, s{sT0}, 3
    s_add_u32 s{sFB}, s{sFB}, s{sXCD}
    s_mul_i32 s{sT1}, s{sXCD}, 3
    s_sub_u32 s{sT2}, s{sPI}, s{sT1}
    s_and_b32 s{sT2}, s{sT2}, 7
    s_add_u32 s{sT1}, s{sT1}, s{sT2}
    s_lshr_b32 s{sT1}, s{sT1}, 3
    s_add_u32 s{sT1}, s{sT1}, 24
    s_mul_i32 s{sGI}, s{sXCD}, 5
    s_add_u32 s{sGI}, s{sGI}, s{sT2}
    s_sub_u32 s{sGI}, s{sGI}, 3
    s_cmp_lt_u32 s{sT2}, 3
    s_cselect_b32 s{sVALID}, 1, 0
    s_cmp_lt_u32 s{sT0}, 3
    s_cselect_b32 s{sVALID}, 1, s{sVALID}
    s_cselect_b32 s{sFB}, s{sFB}, s{sT1}
    s_cmp_eq_u32 s{sPI}, 0
    s_cselect_b64 vcc, -1, 0
    """)
    s += L(f"""
    s_or_b32 s{sT0}, s2, s{sW}
    s_cmp_lg_u32 s{sT0}, 0
    s_cbranch_scc1 NOTAG
    s_lshl_b32 s{sCLK}, s{sCLK}, 3
    s_bitset1_b32 s{sCLK}, 31
    v_mov_b32 v254, s{sCLK}
    s_mov_b64 exec, 1
    buffer_store_dword v254, off, s[{SDBG}:{SDBG+3}], 0 sc1 ; @opt
    s_mov_b64 exec, -1
    NOTAG:
    """)
    s += L(f"""
    s_cmp_lt_u32 s{sW}, 2
    s_cselect_b32 s{P+12}, s{P+12}, s{P+14}
    s_cselect_b32 s{P+13}, s{P+13}, s{P+15}
    s_cmp_lt_u32 s{sW}, 4
    s_cselect_b32 s{SW2}, s{P+12}, s{P+10}
    s_cselect_b32 s{SW2+1}, s{P+13}, s{P+11}
    s_and_b32 s{SW2+1}, s{SW2+1}, 0xffff
    s_mov_b32 s{sT0}, {SZ_WG:#x}
    s_cselect_b32 s{SW2+2}, s{sT0}, {SZ_WQ:#x}
    s_mov_b32 s{SW2+3}, 0x20000
    """)
    s = s[:-4] + L(f"""
    s_mov_b32 s{sT0}, {SZ_WG:#x}
    s_cselect_b32 s{SW2+2}, s{sT0}, {SZ_WQ:#x}
    s_and_b32 s{SW2+1}, s{SW2+1}, 0xffff
    s_mov_b32 s{SW2+3}, 0x20000
    """)
    s += L(f"""
    s_sub_u32 s{sT0}, 15, s{sPI}
    s_cmp_lt_u32 s{sW}, 4
    s_cselect_b32 s{sT1}, s{sT0}, s{sPI}
    s_lshl_b32 s{sT1}, s{sT1}, 7
    s_and_b32 s{sT2}, s{sW}, 3
    s_lshl_b32 s{sT2}, s{sT2}, 5
    s_add_u32 s{sT1}, s{sT1}, s{sT2}
    s_mul_i32 s{soX}, s{sT1}, 1280
    """)
    s += L(f"""
    s_and_b32 s{sT0}, s{sW}, 1
    s_mul_i32 s{sT0}, s{sT0}, {32*3456}
    s_lshl_b32 s{sT1}, s{sFB}, 7
    s_add_u32 s{sT0}, s{sT0}, s{sT1}
    s_and_b32 s{sT1}, s{sW}, 3
    s_lshl_b32 s{sT1}, s{sT1}, 17
    s_lshl_b32 s{sT2}, s{sH}, 8
    s_add_u32 s{sT1}, s{sT1}, s{sT2}
    s_cmp_lt_u32 s{sW}, 4
    s_cselect_b32 s{soG}, s{sT0}, s{sT1}
    """)
    return s

def prefill(k):
    r = PFV
    s = []
    if k == 0:
        s += L(f"""
        s_mul_i32 s{sST}, s2, {PART_WG}
        s_mul_i32 s{sT1}, s{sW}, 4608
        s_add_u32 s{sST}, s{sST}, s{sT1}
        s_add_u32 s{sST}, s{sST}, {PART_OFF:#x}
        """)
    s += [I(f"v_mov_b32 v{r+j}, -1") for j in range(4)]
    s += [I(f"buffer_store_dwordx4 v[{r}:{r+3}], v{vD}, s[{SWS}:{SWS+3}], s{sST} offen sc1"), I(f"s_add_u32 s{sST}, s{sST}, 1024")]
    return s

def pf_kv():
    a, b = vTMP, vT
    s = L(f"""
    s_lshl_b32 s{sT0}, s{sSLOT}, 16
    s_lshl_b32 s{sT1}, s{sW}, 13
    s_add_u32 s{sT0}, s{sT0}, s{sT1}
    v_lshlrev_b32 v{a}, 7, v{vLane}
    buffer_load_dword v{vPOLL}, v{a}, s[{SC}:{SC+3}], s{sT0} offen
    """)
    if "pf64" in OPT: s += L(f"buffer_load_dword v{vPOLL}, v{a}, s[{SC}:{SC+3}], s{sT0} offen offset:64")
    s += L(f"""
    s_lshl_b32 s{sT0}, s{sSLOT}, 17
    s_and_b32 s{sT1}, s{sW}, 3
    s_lshl_b32 s{sT1}, s{sT1}, 15
    s_add_u32 s{sT0}, s{sT0}, s{sT1}
    s_lshl_b32 s{sT1}, s{sXCD}, 10
    s_add_u32 s{sT0}, s{sT0}, s{sT1}
    v_lshlrev_b32 v{a}, 13, v{vG}
    v_lshl_add_u32 v{a}, v{vI16}, 6, v{a}
    buffer_load_dword v{vPOLL}, v{a}, s[{SW1}:{SW1+3}], s{sT0} offen
    """)
    return s

def pf_qg(kind, hf):
    a, b = vTMP, vT
    s = L(f"""
    s_lshl_b32 s{sT0}, s{sSLOT}, 6
    s_lshl_b32 s{sT1}, s{sW}, 3
    s_add_u32 s{sT0}, s{sT0}, s{sT1}
    s_mul_i32 s{sT0}, s{sT0}, 1280
    v_lshrrev_b32 v{a}, 3, v{vLane}
    v_mul_u32_u24 v{a}, 1280, v{a}
    v_and_b32 v{b}, 7, v{vLane}
    v_min_u32 v{b}, 4, v{b}
    v_lshl_add_u32 v{a}, v{b}, 7, v{a}
    buffer_load_dword v{vPOLL}, v{a}, s[{SX}:{SX+3}], s{sT0} offen offset:{640*hf}
    """)
    if "pf64" in OPT: s += L(f"buffer_load_dword v{vPOLL}, v{a}, s[{SX}:{SX+3}], s{sT0} offen offset:{640*hf+64}")
    if kind == 0:
        s += L(f"""
        s_mul_i32 s{sT0}, s{sPI}, 40
        s_and_b32 s{sT1}, s{sW}, 1
        s_mul_i32 s{sT1}, s{sT1}, 20
        s_add_u32 s{sT0}, s{sT0}, s{sT1}
        s_add_u32 s{sT0}, s{sT0}, {320*hf}
        s_mul_i32 s{sT0}, s{sT0}, 3456
        s_lshl_b32 s{sT1}, s{sFB}, 7
        s_add_u32 s{sT0}, s{sT0}, s{sT1}
        v_min_u32 v{b}, 39, v{vLane}
        v_lshrrev_b32 v{a}, 1, v{b}
        v_mul_u32_u24 v{a}, 3456, v{a}
        v_and_b32 v{b}, 1, v{b}
        v_lshl_add_u32 v{a}, v{b}, 6, v{a}
        buffer_load_dword v{vPOLL}, v{a}, s[{SW2}:{SW2+3}], s{sT0} offen
        """)
    elif kind == 1:
        s += L(f"""
        s_mul_i32 s{sT0}, s{sPI}, 40
        s_and_b32 s{sT1}, s{sW}, 3
        s_mul_i32 s{sT1}, s{sT1}, 10
        s_add_u32 s{sT0}, s{sT0}, s{sT1}
        s_add_u32 s{sT0}, s{sT0}, {320*hf}
        s_lshl_b32 s{sT0}, s{sT0}, 13
        s_lshl_b32 s{sT1}, s{sH}, 8
        s_add_u32 s{sT0}, s{sT0}, s{sT1}
        v_min_u32 v{b}, 39, v{vLane}
        v_lshrrev_b32 v{a}, 2, v{b}
        v_lshlrev_b32 v{a}, 13, v{a}
        v_and_b32 v{b}, 3, v{b}
        v_lshl_add_u32 v{a}, v{b}, 6, v{a}
        buffer_load_dword v{vPOLL}, v{a}, s[{SW2}:{SW2+3}], s{sT0} offen
        """)
    return s

def pf_once(kind, part):
    a, b = vTMP, vT
    if part == 0:
        return L(f"""
        s_lshl_b32 s{sT0}, s2, 3
        s_add_u32 s{sT0}, s{sT0}, s{sW}
        s_mul_i32 s{sT0}, s{sT0}, 1280
        v_min_u32 v{a}, 9, v{vLane}
        v_lshlrev_b32 v{a}, 7, v{a}
        buffer_load_dword v{vPOLL}, v{a}, s[{SX}:{SX+3}], s{sT0} offen
        """)
    if kind == 1:
        return L(f"""
        s_lshl_b32 s{sT0}, s2, 2
        s_add_u32 s{sT0}, s{sT0}, s{sW}
        s_sub_u32 s{sT0}, s{sT0}, 4
        s_mul_i32 s{sT0}, s{sT0}, {40*128}
        v_min_u32 v{a}, 39, v{vLane}
        v_lshlrev_b32 v{a}, 7, v{a}
        buffer_load_dword v{vPOLL}, v{a}, s[{SW2}:{SW2+3}], s{sT0} offen
        """)
    return L(f"""
    s_lshl_b32 s{sT0}, s2, 1
    s_and_b32 s{sT1}, s{sW}, 1
    s_add_u32 s{sT0}, s{sT0}, s{sT1}
    s_mul_i32 s{sT0}, s{sT0}, {34*128}
    v_min_u32 v{a}, 33, v{vLane}
    v_lshlrev_b32 v{a}, 7, v{a}
    buffer_load_dword v{vPOLL}, v{a}, s[{SW2}:{SW2+3}], s{sT0} offen
    """)

def pf_kv2(lo, hi):
    a, b = vTMP, vT
    n = hi - lo
    per = n * 4
    return L(f"""
    s_lshl_b32 s{sT0}, s2, 2
    s_and_b32 s{sT1}, s{sW}, 3
    s_add_u32 s{sT0}, s{sT0}, s{sT1}
    s_mul_i32 s{sT0}, s{sT0}, {per*128}
    s_add_u32 s{sT0}, s{sT0}, {lo*64*8192}
    v_min_u32 v{a}, {per-1}, v{vLane}
    v_lshlrev_b32 v{a}, 7, v{a}
    buffer_load_dword v{vPOLL}, v{a}, s[{SW1}:{SW1+3}], s{sT0} offen
    s_lshl_b32 s{sT0}, s2, 3
    s_add_u32 s{sT0}, s{sT0}, s{sW}
    s_lshl_b32 s{sT0}, s{sT0}, 10
    v_min_u32 v{a}, {n-1}, v{vLane}
    v_lshlrev_b32 v{a}, 7, v{a}
    buffer_load_dword v{vPOLL}, v{a}, s[{SC}:{SC+3}], s{sT0} offen offset:{lo*128}
    """)

def pf_w3(k):
    a = vTMP
    R, idx = (SWO, k) if k < 4 else (SWD, k - 4)
    return L(f"""
    s_lshl_b32 s{sT0}, s{sGI}, 2
    s_add_u32 s{sT0}, s{sT0}, s{sW}
    s_add_u32 s{sT0}, s{sT0}, {160*idx}
    s_lshl_b32 s{sT0}, s{sT0}, 13
    v_lshlrev_b32 v{a}, 3, v{vD}
    buffer_load_dword v124, v{a}, s[{R}:{R+3}], s{sT0} offen
    """)

def pf_c():
    a = vTMP
    return L(f"""
    s_lshl_b32 s{sT0}, s2, 3
    s_add_u32 s{sT0}, s{sT0}, s{sW}
    s_lshl_b32 s{sT0}, s{sT0}, 10
    v_and_b32 v{a}, 7, v{vLane}
    v_lshlrev_b32 v{a}, 7, v{a}
    buffer_load_dword v{vPOLL}, v{a}, s[{SC}:{SC+3}], s{sT0} offen
    """)

def dma4(m_expr, v, R, so, tag, inc, extra=""):
    g = [[I(m_expr), I("s_nop 0"), dma(v[0], R, so, 0, tag, extra)]] + [[dma(v[n], R, so, n * 1024, tag, extra)] for n in range(1, 4)]
    if inc: g[-1].append(I(f"s_add_u32 s{so}, s{so}, {inc}"))
    return g

def kv_dma(stage):
    buf = (stage % 2) * 65536
    tag = f"kv{stage}"
    return dma4(f"s_add_u32 m0, s{mA}, {buf}", vDC, SC, soC, tag, 128) + dma4(f"s_add_u32 m0, s{mWk}, {buf}", vDW, SW1, soW, tag, 64 * 8192)

def qg_dma(kind, stage):
    buf = (stage % 2) * 65536
    tag = f"qg{stage}"
    g = dma4(f"s_add_u32 m0, s{mA}, {buf}", vDX, SX, soX, tag, 128)
    if kind != 2:
        g += dma4(f"s_add_u32 m0, s{mWk}, {buf}", vDW, SW2, soG, tag, 64 * (3456 if kind == 0 else 8192))
    return g

def kv_addr():
    t0, t1, t2 = 32, 33, 34
    s = L(f"""
    s_lshr_b32 s{sT0}, s{sW}, 1
    s_and_b32 s{sT0}, s{sT0}, 1
    s_lshl_b32 s{sT0}, s{sT0}, 14
    v_lshrrev_b32 v{t0}, 1, v{vI16}
    v_xor_b32 v{t0}, v{t0}, v{vG}
    v_lshlrev_b32 v{t0}, 4, v{t0}
    v_lshl_add_u32 v{t0}, v{vI16}, 7, v{t0}
    v_add_u32 v{vRA[0][0]}, s{sT0}, v{t0}
    v_xor_b32 v{vRA[0][1]}, 64, v{vRA[0][0]}
    v_add_u32 v{vRA[1][0]}, 0x10000, v{vRA[0][0]}
    v_add_u32 v{vRA[1][1]}, 0x10000, v{vRA[0][1]}
    s_lshl_b32 s{sT0}, s{sP}, 14
    s_add_u32 s{sT0}, s{sT0}, 32768
    s_and_b32 s{sT1}, s{sW}, 1
    s_lshl_b32 s{sT1}, s{sT1}, 2
    v_lshrrev_b32 v{t0}, 2, v{vI16}
    v_and_b32 v{t1}, 1, v{vG}
    v_lshl_add_u32 v{t1}, v{t1}, 2, v{t0}
    v_xor_b32 v{t1}, s{sT1}, v{t1}
    v_lshl_add_u32 v{t0}, v{vG}, 3, v{t0}
    v_lshlrev_b32 v{t0}, 8, v{t0}
    v_and_b32 v{t2}, 3, v{vI16}
    v_lshl_add_u32 v{t0}, v{t2}, 3, v{t0}
    v_add_u32 v{t0}, s{sT0}, v{t0}
    """)
    for j in range(4):
        s += L(f"""
        v_xor_b32 v{t2}, {j}, v{t1}
        v_lshl_add_u32 v{vRW[0][j]}, v{t2}, 5, v{t0}
        v_add_u32 v{vRW[1][j]}, 0x10000, v{vRW[0][j]}
        """)
    return s

def gu_dma_addr():
    a, b = vTMP, vT
    s = []
    for n in range(4):
        s += L(f"""
        v_bfe_u32 v{a}, v{vLane}, 1, 2
        v_and_b32 v{b}, 1, v{vG}
        v_xor_b32 v{a}, v{a}, v{b}
        v_xor_b32 v{a}, {(n&1)<<1}, v{a}
        v_lshlrev_b32 v{a}, 5, v{a}
        v_and_b32 v{b}, 1, v{vLane}
        v_lshl_add_u32 v{a}, v{b}, 4, v{a}
        v_lshrrev_b32 v{b}, 3, v{vLane}
        v_add_u32 v{b}, {8*n}, v{b}
        v_mul_u32_u24 v{b}, 3456, v{b}
        v_add_u32 v{vDW[n]}, v{b}, v{a}
        v_subrev_u32 v{vDW[n]}, {n*1024}, v{vDW[n]}
        """)
    return s

def gu_read_addr(buf):
    a, b = vTMP, vT
    r0, r1 = vRW[buf][0], vRW[buf][1]
    return L(f"""
    s_and_b32 s{sT1}, s{sW}, 1
    s_lshl_b32 s{sT1}, s{sT1}, 1
    v_lshrrev_b32 v{a}, 3, v{vI16}
    v_and_b32 v{b}, 1, v{vG}
    v_lshl_add_u32 v{a}, v{b}, 1, v{a}
    v_xor_b32 v{a}, s{sT1}, v{a}
    v_lshrrev_b32 v{b}, 2, v{vI16}
    v_lshl_add_u32 v{b}, v{vG}, 3, v{b}
    v_lshlrev_b32 v{b}, 7, v{b}
    v_and_b32 v{r1}, 3, v{vI16}
    v_lshl_add_u32 v{b}, v{r1}, 3, v{b}
    v_add_u32 v{b}, {32768 + buf*65536:#x}, v{b}
    v_lshl_add_u32 v{r0}, v{a}, 5, v{b}
    v_xor_b32 v{a}, 1, v{a}
    v_lshl_add_u32 v{r1}, v{a}, 5, v{b}
    """)

def kv_reads(stage, kk, st):
    b = stage % 2
    base = SET[st]
    c = lambda tt: rd128(base + 4 * tt, vRA[b][kk], tt * 2048)
    w = lambda j: [rdtr(base + 32 + 4 * j, vRW[b][j], kk * 8192), rdtr(base + 32 + 4 * j + 2, vRW[b][j], kk * 8192 + 1024)]
    return w(0) + [c(0)] + w(1) + w(2) + w(3) + [c(t) for t in range(1, 8)]

def kv_mfmas(kind, st, first, rev=False):
    base = SET[st]
    out = []
    for tt in (range(7, -1, -1) if rev else range(8)):
        for j in range(4):
            d = ACC + (tt * 4 + j) * 4
            cf, wf = base + 4 * tt, base + 32 + 4 * j
            out.append(mf(d, wf, cf, 0 if first else None) if kind != 1 else mf(d, cf, wf, 0 if first else None))
    return out

WB = [32, 48]; XR = 64
acc2 = lambda t: (80 + 4 * t) if t < 12 else (128 + 4 * (t - 12))
PK = 192
def qg_wreads(kind, stage, kk):
    b = stage % 2; base = WB[kk]
    out = []
    for j in range(4):
        if kind == 0:
            o = (j >> 1) * 8192 + kk * 4096
            out += [rdtr(base + 4 * j, vRW[b][j & 1], o), rdtr(base + 4 * j + 2, vRW[b][j & 1], o + 512)]
        else:
            out += [rdtr(base + 4 * j, vRW[b][j], kk * 8192), rdtr(base + 4 * j + 2, vRW[b][j], kk * 8192 + 1024)]
    return out
def qg_xread(stage, n):
    kk, tt = n >> 3, n & 7
    return rd128(XR + 4 * (n % 4), vRA[stage % 2][kk], tt * 2048)
def qg_mfmas(stage):
    out = []
    for n in range(16):
        kk, tt = n >> 3, n & 7
        for j in range(4):
            out.append(mf(acc2(tt * 4 + j), WB[kk] + 4 * j, XR + 4 * (n % 4), 0 if (stage == 0 and kk == 0) else None))
    return out

def kv_store_base(kind):
    if kind != 1:
        return L(f"""
        s_lshl_b32 s{sST}, s{sH}, 19
        s_add_u32 s{sST}, s{sST}, {KF_OFF:#x}
        s_lshl_b32 s{sT0}, s{sPI}, 16
        s_add_u32 s{sST}, s{sST}, s{sT0}
        s_lshr_b32 s{sT0}, s{sW}, 1
        s_lshl_b32 s{sT0}, s{sT0}, 15
        s_add_u32 s{sST}, s{sST}, s{sT0}
        s_and_b32 s{sT0}, s{sW}, 1
        s_lshl_b32 s{sT0}, s{sT0}, 11
        s_add_u32 s{sST}, s{sST}, s{sT0}
        """)
    return L(f"""
    s_lshl_b32 s{sST}, s{sH}, 19
    s_add_u32 s{sST}, s{sST}, {KF_OFF + VF_OFF:#x}
    s_lshl_b32 s{sT0}, s{sPI}, 16
    s_add_u32 s{sST}, s{sST}, s{sT0}
    s_lshr_b32 s{sT0}, s{sW}, 1
    s_and_b32 s{sT0}, s{sT0}, 1
    s_lshl_b32 s{sT0}, s{sT0}, 15
    s_add_u32 s{sST}, s{sST}, s{sT0}
    s_and_b32 s{sT0}, s{sW}, 1
    s_lshl_b32 s{sT0}, s{sT0}, 12
    s_add_u32 s{sST}, s{sST}, s{sT0}
    """)

def kv_packs(kind):
    A = lambda tt, j: ACC + (tt * 4 + j) * 4
    out = []
    for k in range(15, -1, -1):
        if kind != 1: x, y = A(k >> 1, 2 * (k & 1)), A(k >> 1, 2 * (k & 1) + 1)
        else: x, y = A(2 * (k >> 2), k & 3), A(2 * (k >> 2) + 1, k & 3)
        out += pack2(PK + 4 * k, x, y)[::-1]
    return out

def kv_store(kind, k):
    r = PK + 4 * k
    if kind != 1:
        s = [I(f"buffer_store_dwordx4 v[{r}:{r+3}], v{vD}, s[{SWS}:{SWS+3}], s{sST} offen offset:{(k&1)*1024}{KVSC}")]
        if k & 1: s.append(I(f"s_add_u32 s{sST}, s{sST}, 4096"))
    else:
        s = [I(f"buffer_store_dwordx4 v[{r}:{r+3}], v{vD}, s[{SWS}:{SWS+3}], s{sST} offen offset:{(k&3)*1024}{KVSC}")]
        if k & 3 == 3: s.append(I(f"s_add_u32 s{sST}, s{sST}, 8192"))
    return s

def signal(val, lab, vt=vPOLL):
    return L(f"""
    s_cmp_lg_u32 s{sW}, 0
    s_cbranch_scc1 {lab}
    v_mov_b32 v{vt}, {val}
    v_add_u32 v{vt}, s{sNL}, v{vt}
    s_mov_b64 exec, 1
    buffer_store_dword v{vt}, off, s[{SWS}:{SWS+3}], s{sFLAG} sc1 ; @opt
    s_mov_b64 exec, -1
    {lab}:
    """)

STUBS = []
SETS = {"A": (0x1, 0), "B": (0xffff, 0), "C": (0xffff0000, 0), "D": (0, 0x0f), "E": (0, 0xf0)}
def set_mask(which, d):
    lo, hi = SETS[which]
    return L(f"s_mov_b32 {d}_lo, {lo:#x}\ns_mov_b32 {d}_hi, {hi:#x}")
def poll_load(which, vp, tag=None):
    return set_mask(which, "exec") + L(f"""
    buffer_load_dword v{vp}, v{vMAP}, s[{SWS}:{SWS+3}], 0 offen sc1{" ; @" + tag if tag else ""}
    s_mov_b64 exec, -1
    """)
def flag_chk(which, vp, n):
    lo, hi = SETS[which]
    return L(f"""
    s_add_u32 s{sT2}, s{sNL}, {n}
    v_subrev_u32 v{vp}, s{sT2}, v{vp}
    v_cmp_le_u32 vcc, {8-n}, v{vp}
    s_mov_b32 s{sT2}, {lo:#x}
    s_mov_b32 s{sT3}, {hi:#x}
    s_and_b64 vcc, s[{sT2}:{sT3}], vcc
    """)
def spin(which, vp, n, lab):
    return L(f"""
    s_mov_b32 s{sPC}, 0
    {lab}_L:
    """) + poll_load(which, vp) + L(f"""
    s_add_u32 s{sPC}, s{sPC}, 1
    s_waitcnt vmcnt(0)
    """) + flag_chk(which, vp, n) + L(f"""
    s_cbranch_vccz {lab}_C
    s_cmp_ge_u32 s{sPC}, 0x40000
    s_cbranch_scc1 {lab}_C
    s_sleep 3
    s_branch {lab}_L
    """)
def poll_check(which, vp, tag, n, lab):
    s = [waitvm(tag) if tag else I("s_waitcnt vmcnt(0)")] + flag_chk(which, vp, n) + L(f"s_cbranch_vccnz {lab}_S\n{lab}_C:")
    STUBS.append(L(f"{lab}_S:") + spin(which, vp, n, lab))
    return s

def tag_load():
    return L(f"buffer_load_dword v{vPOLL}, off, s[{SDBG}:{SDBG+3}], 0 sc1 ; @tag")
def tag_check(lab):
    rd = L(f"""
    v_readfirstlane_b32 s{sNL}, v{vPOLL}
    s_cmp_eq_u32 s{sNL}, 0
    """)
    STUBS.append(L(f"""
    {lab}_S:
    s_mov_b32 s{sPC}, 0
    {lab}_L:
    s_sleep 8
    buffer_load_dword v{vPOLL}, off, s[{SDBG}:{SDBG+3}], 0 sc1
    s_add_u32 s{sPC}, s{sPC}, 1
    s_cmp_ge_u32 s{sPC}, 0x40000
    s_waitcnt vmcnt(0)
    s_cbranch_scc1 {lab}_C
    """) + rd + L(f"s_cbranch_scc1 {lab}_L\ns_branch {lab}_C"))
    return [waitvm("tag")] + rd + L(f"s_cbranch_scc1 {lab}_S\n{lab}_C:")

def flag_map():
    a, b, c, d = 24, 25, 26, 27
    m = 80
    C, MT, PM, HH = m, m + 1, m + 2, m + 3
    g = [[i] for i in L(f"""
    s_and_b32 s{C}, s{sXCD}, 3
    s_lshr_b32 s{MT}, s{sXCD}, 2
    s_lshl_b32 s{MT}, s{MT}, 3
    s_add_u32 s{MT}, s{MT}, s{sPI}
    s_sub_u32 s{PM}, 15, s{MT}
    s_min_u32 s{PM}, s{PM}, s{MT}
    s_and_b32 s{HH}, s{sSLOT}, 3
    s_lshl_b32 s{m+4}, s{sPI}, 1
    s_sub_u32 s{m+5}, 30, s{m+4}
    s_lshl_b32 s{m+6}, s{MT}, 1
    s_mov_b32 s{m+8}, 0xcccc
    s_mov_b32 s{m+9}, 0
    s_mov_b32 s{m+10}, 0xffff0000
    s_mov_b32 s{m+11}, -1
    v_mov_b32 v{a}, s{m+5}
    v_mov_b32 v{b}, s{m+4}
    v_cndmask_b32 v{a}, v{a}, v{b}, s[{m+8}:{m+9}]
    v_mov_b32 v{b}, s{m+6}
    v_cndmask_b32 v{a}, v{a}, v{b}, s[{m+10}:{m+11}]
    v_and_b32 v{b}, 1, v{vLane}
    v_add_u32 v{a}, v{a}, v{b}
    v_mul_u32_u24 v{b}, 52, v{a}
    v_lshrrev_b32 v{b}, 8, v{b}
    v_lshlrev_b32 v{c}, 1, v{b}
    v_sub_u32 v{a}, v{a}, v{c}
    v_add_u32 v{a}, 3, v{a}
    v_and_b32 v{a}, 7, v{a}
    v_lshl_add_u32 v{a}, v{b}, 5, v{a}
    v_add_u32 v{a}, 24, v{a}
    s_mul_i32 s{m+4}, s{C}, 7
    v_and_b32 v{d}, 7, v{vLane}
    v_min_u32 v{b}, 6, v{d}
    v_add_u32 v{b}, s{m+4}, v{b}
    v_min_u32 v{b}, 26, v{b}
    v_and_b32 v{c}, 7, v{b}
    v_lshlrev_b32 v{c}, 2, v{c}
    v_lshrrev_b32 v{vT}, 3, v{b}
    v_add_u32 v{c}, v{c}, v{vT}
    v_cmp_le_u32 s[{m+8}:{m+9}], 24, v{b}
    v_subrev_u32 v{b}, 24, v{b}
    v_lshlrev_b32 v{b}, 3, v{b}
    v_add_u32 v{b}, s{PM}, v{b}
    v_mul_u32_u24 v{b}, 86, v{b}
    v_lshrrev_b32 v{b}, 8, v{b}
    v_lshlrev_b32 v{b}, 2, v{b}
    v_add_u32 v{b}, 3, v{b}
    v_cndmask_b32 v{c}, v{c}, v{b}, s[{m+8}:{m+9}]
    v_lshlrev_b32 v{c}, 3, v{c}
    v_add_u32 v{c}, s{PM}, v{c}
    s_mov_b32 s{m+8}, 0x00ff0000
    s_mov_b32 s{m+9}, 0
    v_cndmask_b32 v{a}, v{a}, v{c}, s[{m+8}:{m+9}]
    s_and_b32 s{m+4}, s{sXCD}, 4
    s_lshl_b32 s{m+4}, s{m+4}, 2
    s_add_u32 s{m+4}, s{m+4}, s{HH}
    s_lshl_b32 s{m+4}, s{m+4}, 3
    s_add_u32 s{m+4}, s{m+4}, s{sPI}
    v_and_b32 v{b}, 3, v{vLane}
    v_lshlrev_b32 v{b}, 5, v{b}
    v_add_u32 v{b}, s{m+4}, v{b}
    s_mov_b32 s{m+10}, 0xf0000000
    s_mov_b32 s{m+11}, 0
    v_cndmask_b32 v{a}, v{a}, v{b}, s[{m+10}:{m+11}]
    s_lshl_b32 s{m+4}, s{sH}, 3
    v_add_u32 v{b}, s{m+4}, v{d}
    s_mov_b32 s{m+8}, 0xff
    v_cndmask_b32 v{a}, v{a}, v{b}, s[{m+8}:{m+9}]
    s_lshl_b32 s{m+4}, s{C}, 6
    s_add_u32 s{m+4}, s{m+4}, s{PM}
    v_lshlrev_b32 v{b}, 3, v{d}
    v_add_u32 v{b}, s{m+4}, v{b}
    s_mov_b32 s{m+10}, 0
    s_mov_b32 s{m+11}, -1
    v_cndmask_b32 v{a}, v{a}, v{b}, s[{m+10}:{m+11}]
    v_lshlrev_b32 v{a}, 8, v{a}
    v_add_u32 v{vMAP}, {FLAG_OFF:#x}, v{a}
    """)]
    return g

def kv_part(kind):
    s = []
    for st in range(8):
        f = spread(kv_reads(st, 1, 1), 0, 24)
        if 1 <= st <= 5 and "nofill" not in OPT: f = [(-1, prefill(st - 1))] + f
        if st == 0 and "b3" in OPT: f += spread(pf_kv2(2, 8), 0, 14)
        if st == 0 and "pfkv" in OPT: f += spread(pf_kv(), 2, 30)
        if st == 2: f.append((4, tag_load()))
        if st == 4 and "pfq" in OPT: f += spread(pf_qg(kind, 0), 2, 30)
        if st == 6 and kind == 0: f += spread(gu_dma_addr(), 4, 30)
        if st == 7: f += spread(kv_store_base(kind), 24, 31)
        s += weave(kv_mfmas(kind, 0, st == 0), f)
        s += [waitvm(f"kv{st+1}" if st < 7 else "qg0", lgkm=True), I("s_barrier")] + [stamp(2 + st if st not in (4, 5, 6) else 35 + st)]
        if st == 3: s += tag_check(f"TAG{kind}")
        if st < 7:
            f = spread(kv_reads(st + 1, 0, 0), 0, 24) + spread(kv_dma(st + 2) if st < 6 else qg_dma(kind, 0), 1, 25)
            if "pfc" in OPT and st == 0: f += spread(pf_c(), 25, 31)
            if "b2" in OPT and st == 0: f += spread(pf_kv2(5, 8), 25, 31)
            if "b4" in OPT and st == 0: f += spread(pf_kv2(4, 8), 25, 31)
            if "pfm" in OPT and st == 0: f += spread(pf_once(kind, 0), 25, 31)
            if "pfm" in OPT and st == 4: f += spread(pf_once(kind, 1), 25, 31)
            if "nopfn" not in OPT and st == 4: f += spread(pf_once(kind, 0), 25, 31)
            if "nopfn" not in OPT and st == 5: f += spread(pf_once(kind, 1), 25, 31)
            if "pfl" in OPT and st == 4: f += spread(pf_qg(kind, 0), 25, 31)
        else:
            f = spread(qg_dma(kind, 1), 1, 25)
            if kind == 0: f += [(-1, gu_read_addr(0))] + spread(gu_read_addr(1), 20, 31)
            if kind != 2: f += spread(qg_wreads(kind, 0, 0)[:2] + [qg_xread(0, 0)] + qg_wreads(kind, 0, 0)[2:] + [qg_xread(0, n) for n in (1, 2, 3)], 2, 24)
        s += weave(kv_mfmas(kind, 1, False, st == 7), f)
    return s

C1 = 2.0 * 0.7978845608028654 * 1.4426950408889634
QSC = 1.4426950408889634 * 128 ** -0.5
BARP = 52

def g_pass(ps):
    X, W, A, T = 32, 72, 112, 116
    ld = L(f"""
    s_lshl_b32 s{sT0}, s{sGI}, 6
    s_lshl_b32 s{sT1}, s{sW}, 4
    s_add_u32 s{sT0}, s{sT0}, s{sT1}
    s_add_u32 s{sT0}, s{sT0}, {8*ps}
    v_lshrrev_b32 v{T}, 3, v{vLane}
    v_add_u32 v{T}, s{sT0}, v{T}
    v_and_b32 v{T+1}, 7, v{vLane}
    v_lshlrev_b32 v{T+1}, 4, v{T+1}
    v_mul_u32_u24 v{T+2}, 1280, v{T}
    v_add_u32 v{T+2}, v{T+2}, v{T+1}
    """)
    for j in range(10):
        ld.append(I(f"buffer_load_dwordx4 v[{X+4*j}:{X+4*j+3}], v{T+2}, s[{SX}:{SX+3}], 0 offen offset:{j*128} ; @g{ps}"))
        if ps == 0: ld.append(I(f"buffer_load_dwordx4 v[{W+4*j}:{W+4*j+3}], v{T+1}, s[{SGW}:{SGW+3}], 0 offen offset:{j*128} ; @g{ps}"))
    s = L(f"""
    v_mov_b32 v{A}, 0
    v_mov_b32 v{A+1}, 0
    s_mov_b32 s{sT1}, 0xffff0000
    """) + [waitvm(f"g{ps}")]
    t = T + 4
    for r in range(40):
        s += L(f"""
        v_lshlrev_b32 v{t}, 16, v{X+r}
        v_and_b32 v{t+1}, s{sT1}, v{X+r}
        v_lshlrev_b32 v{t+2}, 16, v{W+r}
        v_and_b32 v{t+3}, s{sT1}, v{W+r}
        v_mul_f32 v{t}, v{t}, v{t+2}
        v_mul_f32 v{t+1}, v{t+1}, v{t+3}
        v_cvt_pk_bf16_f32 v{t}, v{t}, v{t+1}
        v_and_b32 v{t+1}, s{sT1}, v{t}
        v_lshlrev_b32 v{t}, 16, v{t}
        v_add_f32 v{A}, v{A}, v{t}
        v_add_f32 v{A+1}, v{A+1}, v{t+1}
        """)
    s += L(f"""
    v_add_f32 v{A}, v{A}, v{A+1}
    s_nop 1
    v_add_f32_dpp v{A}, v{A}, v{A} quad_perm:[1,0,3,2] row_mask:0xf bank_mask:0xf
    s_nop 1
    v_add_f32_dpp v{A}, v{A}, v{A} quad_perm:[2,3,0,1] row_mask:0xf bank_mask:0xf
    s_nop 1
    v_add_f32_dpp v{A}, v{A}, v{A} row_half_mirror row_mask:0xf bank_mask:0xf
    v_cvt_pk_bf16_f32 v{A}, v{A}, v{A}
    v_lshlrev_b32 v{A}, 16, v{A}
    v_mul_f32 v{A}, {f2h(-1.4426950408889634)}, v{A}
    v_exp_f32 v{A}, v{A}
    s_nop 0
    v_add_f32 v{A}, 1.0, v{A}
    v_rcp_f32 v{A}, v{A}
    s_nop 0
    v_cvt_pk_bf16_f32 v{A}, v{A}, v{A}
    v_lshlrev_b32 v{A}, 16, v{A}
    v_sub_f32 v{A+1}, 1.0, v{A}
    v_cvt_pk_bf16_f32 v{A+1}, v{A+1}, v{A+1}
    v_lshlrev_b32 v{A+1}, 16, v{A+1}
    v_lshlrev_b32 v{T}, 2, v{T}
    s_mov_b32 s{sT1}, {G_OFF:#x}
    s_cmp_ge_u32 s{sGI}, 32
    s_cselect_b32 s{sT1}, 0x70000000, s{sT1}
    buffer_store_dword v{A}, v{T}, s[{SWS}:{SWS+3}], s{sT1} offen sc1
    s_add_u32 s{sT1}, s{sT1}, 8192
    buffer_store_dword v{A+1}, v{T}, s[{SWS}:{SWS+3}], s{sT1} offen sc1
    """)
    return ld, s

EARLY = {0: [4, 5, 6], 1: [7, 8, 9], 2: [10, 11, 12], 3: [13, 14, 15]}
LATE = {1: [4, 5], 2: [6, 7], 3: [8, 9], 4: [10, 11], 5: [12, 13], 6: [14], 7: [15]}
def qg_part(kind, att_first, att_second, extra):
    s = []
    pend = []
    for st in range(10):
        f = []
        if pend: f += spread(pend, 0, 20)
        if kind != 2:
            f += [(4 * (n - 4) + 3, qg_xread(st, n)) for n in range(4, 16)]
            f += [(5 + 3 * k, r) for k, r in enumerate(qg_wreads(kind, st, 1))]
        if st == 0:
            pk = kv_packs(kind)
            if kind == 2: f += [(-1, [I("s_nop 7")])]
            f += spread(pk, 0, 11) + [(12 + 4 * k, kv_store(kind, k)) for k in range(4)]
        for i, k in enumerate(EARLY.get(st, [])):
            f.append((30 + 8 * i if st == 0 else 22 + 10 * i, guarded(1, kv_store(kind, k))))
        for i, k in enumerate(LATE.get(st, [])):
            f.append((21 + 16 * i, guarded(0, kv_store(kind, k))))
        if st == 1 and ("pfq" in OPT or "pfl" in OPT): f += spread(pf_qg(kind, 1), 24, 46)
        if kind == 2:
            if st == 0: f.append((47, g_pass(0)[0]))
            if st == 1: f.append((47, g_pass(0)[1] + g_pass(1)[0]))
            if st == 2: f.append((47, g_pass(1)[1]))
            if "nopf3" not in OPT:
                for k in {3: [4, 5], 4: [0], 5: [1], 6: [2], 7: [3]}.get(st, []): f.append((21, pf_w3(k)))
        if st == 8: f += spread(flag_map(), 6, 40) + [(41, poll_load("A", vPOLL, "p1"))]
        f += extra.get(st, [])
        d = []
        if st < 9:
            bar = [waitvm(f"qg{st+1}", lgkm=True), I("s_barrier"), stamp(10 + st)]
            if st == 4: bar += guarded(1, signal(1, f"SIG1_{kind}"))
            if st == 8: bar += poll_check("A", vPOLL, "p1", 1, f"PL1_{kind}")
            f.append((BARP, bar))
            if kind != 2:
                w = qg_wreads(kind, st + 1, 0)
                f.append((BARP, w[:2] + [qg_xread(st + 1, 0)]))
                f += [(BARP + 1 + k, w[2 + k]) for k in range(6)]
                f += [(55, qg_xread(st + 1, 1)), (59, qg_xread(st + 1, 2)), (63, qg_xread(st + 1, 3))]
            d = qg_dma(kind, st + 2) if st < 8 else att_first
            f += spread(d[:3], BARP + 2, 63)
        else:
            bar = [waitvm("k0", lgkm=True), I("s_barrier"), stamp(19)] + (signal(2, f"SIG2_{kind}") if kind != 1 else [])
            if kind == 0: bar += [I("s_setprio 1")]
            f.append((BARP - 4, bar))
            f += spread(att_second, BARP - 3, 63)
        pend = d[3:]
        s += weave(qg_mfmas(st) if kind != 2 else [], f)
    assert not pend
    return s

def geglu():
    s = L(f"""
    s_sub_u32 s{sT0}, 15, s{sPI}
    s_cmp_lt_u32 s{sW}, 2
    s_cselect_b32 s{sST}, s{sT0}, s{sPI}
    s_mul_i32 s{sST}, s{sST}, {AF_MT}
    s_add_u32 s{sST}, s{sST}, {AF_OFF:#x}
    s_lshl_b32 s{sT1}, s{sFB}, 14
    s_add_u32 s{sST}, s{sST}, s{sT1}
    s_and_b32 s{sT0}, s{sW}, 1
    s_lshl_b32 s{sT0}, s{sT0}, 10
    s_add_u32 s{sST}, s{sST}, s{sT0}
    s_mov_b32 s{sT0}, {f2h(-C1 * 0.044715)}
    v_mov_b32 v{vT}, {f2h(-C1)}
    """)
    for tt in range(8):
        tb = 32 + (tt % 2) * 16
        regs = [(acc2(tt * 4 + j) + r, acc2(tt * 4 + 2 + j) + r) for j in range(2) for r in range(4)]
        T = [tb + k for k in range(8)]
        for k, (a, u) in enumerate(regs): s.append(I(f"v_mul_f32 v{T[k]}, v{a}, v{a}"))
        for k, (a, u) in enumerate(regs): s.append(I(f"v_fma_f32 v{T[k]}, v{T[k]}, s{sT0}, v{vT}"))
        for k, (a, u) in enumerate(regs): s.append(I(f"v_mul_f32 v{T[k]}, v{T[k]}, v{a}"))
        for k, (a, u) in enumerate(regs): s.append(I(f"v_exp_f32 v{T[k]}, v{T[k]}"))
        for k, (a, u) in enumerate(regs): s.append(I(f"v_add_f32 v{T[k]}, 1.0, v{T[k]}"))
        for k, (a, u) in enumerate(regs): s.append(I(f"v_rcp_f32 v{T[k]}, v{T[k]}"))
        for k, (a, u) in enumerate(regs): s.append(I(f"v_mul_f32 v{a}, v{a}, v{u}"))
        for k, (a, u) in enumerate(regs): s.append(I(f"v_mul_f32 v{T[k]}, v{T[k]}, v{a}"))
        o = tb + 8
        s += pack2(o, T[0], T[4])
        s.append(I(f"buffer_store_dwordx4 v[{o}:{o+3}], v{vD}, s[{SWS}:{SWS+3}], s{sST} offen offset:{(tt%2)*2048} sc1"))
        if tt % 2 == 1 and tt < 7: s.append(I(f"s_add_u32 s{sST}, s{sST}, 4096"))
    s.append(I("s_setprio 0"))
    return s

QB_LDS = 32768
def qepi():
    s = L(f"""
    s_bitcmp1_b32 s{sW}, 1
    s_cselect_b32 s{sT0}, {QB_LDS//1024}, {QS//1024 - 128}
    s_cselect_b32 s{sT1}, 0, 128
    s_add_u32 s{sT0}, s{sT0}, s{sT1}
    s_and_b32 s{sT1}, s{sW}, 1
    s_lshl_b32 s{sT1}, s{sT1}, 1
    s_add_u32 s{sT0}, s{sT0}, s{sT1}
    s_lshl_b32 s{sT0}, s{sT0}, 10
    v_add_u32 v{vTMP}, s{sT0}, v{vD}
    s_mov_b32 s{sT0}, {f2h(QSC)}
    """)
    k = 0
    for tt in range(8):
        for jj in range(2):
            x, y = acc2(tt * 4 + 2 * jj), acc2(tt * 4 + 2 * jj + 1)
            s += [I(f"v_mul_f32 v{x+r}, s{sT0}, v{x+r}") for r in range(4)] + [I(f"v_mul_f32 v{y+r}, s{sT0}, v{y+r}") for r in range(4)]
            tmp = 32 + 4 * (k % 8); k += 1
            s += pack2(tmp, x, y)
            s.append(I(f"ds_write_b128 v{vTMP}, v[{tmp}:{tmp+3}] offset:{tt*4096 + jj*1024}"))
    return s
```

```python
from fz1 import *

sKoff, sVoff, mK, mV = 44, 45, 46, 47
sC1, sC2, sMO, sKX, sKXL, sTHR = 48, 49, 50, 51, 52, 53
sRET = 54
sSIG, sSTA, sSTB, sKJ = 56, 57, 58, 59
HOOK = {}
sEXW, sEXR, sMLW, sMLR = 32, 33, 34, 35
sMASK = 60
vK, vV, vGB1, vQ = 5, 6, 7, 8
vTS = [9, 10]; vL = [11, 12]
vGA, vGB0, vNEG = 13, 14, 15
vA = [16, 17, 18, 19, 20, 21, 22, 23]
E = 24
NM = [32, 36]
P1R = 40; P0R = [56, 48]
FR = 64
S = [128, 96]
Q = 160
O = 192
Sreg = lambda buf, a, qb: S[buf] + (a * 2 + qb) * 4
Qreg = lambda qb, u: Q + (qb * 4 + u) * 4
Oreg = lambda b, qb: O + (b * 2 + qb) * 4
SLOTB, HALFB = 0x10000, 0x4000
ML_LDS = 151552

def k_dma(tag=None):
    g = dma4(f"s_mov_b32 m0, s{mK}", [vD] * 4, SWS, sKoff, tag, 32768, " sc1")
    g[-1].append(I(f"s_xor_b32 s{mK}, s{mK}, {SLOTB:#x}"))
    return g
def v_dma(tag=None):
    g = dma4(f"s_mov_b32 m0, s{mV}", [vD] * 4, SWS, sVoff, tag, 32768, " sc1")
    g[-1].append(I(f"s_xor_b32 s{mV}, s{mV}, {SLOTB:#x}"))
    return g

def att_scalars():
    return L(f"""
    s_lshl_b32 s{sKoff}, s{sH}, 19
    s_add_u32 s{sKoff}, s{sKoff}, s{mA}
    s_add_u32 s{sKoff}, s{sKoff}, {KF_OFF:#x}
    s_add_u32 s{sVoff}, s{sKoff}, {VF_OFF:#x}
    s_mov_b32 s{mK}, s{mA}
    s_add_u32 s{mV}, s{mA}, {32768 + SLOTB}
    """)

def mask_cmps(typ, t):
    s = L(f"""
    s_and_b32 s{sT3}, s{sW}, 3
    s_lshl_b32 s{sT3}, s{sT3}, 5
    """)
    if typ: s += L(f"s_sub_i32 s{sT3}, s{sT3}, 64")
    s += L(f"""
    v_lshlrev_b32 v{t}, 2, v{vG}
    v_sub_u32 v{t}, v{vI16}, v{t}
    v_add_u32 v{t}, s{sT3}, v{t}
    """)
    for d in range(5):
        for rr in range(4):
            m = sMASK + 2 * (d * 4 + rr)
            s.append(I(f"v_cmp_gt_i32 s[{m}:{m+1}], {16*(d-1)+rr}, v{t}"))
    return s

def att_setup(grp):
    s = L(f"""
    v_mov_b32 v{vK}, v{vD}
    v_add_u32 v{vV}, {32768 + SLOTB}, v{vD}
    s_and_b32 s{sT0}, s{sW}, 3
    s_lshl_b32 s{sT1}, s{sT0}, 13
    s_add_u32 s{sT1}, s{sT1}, {QB_LDS if grp else QS}
    v_add_u32 v{vQ}, s{sT1}, v{vD}
    s_add_u32 s{sC1}, s{sPI}, {1 - grp}
    s_sub_u32 s{sC2}, 7, s{sPI}
    s_mov_b32 s{sKXL}, {HALFB if grp else SLOTB:#x}
    s_mov_b32 s{sTHR}, {f2h(256.0)}
    s_lshl_b32 s{sT1}, s{sH}, 15
    s_add_u32 s{sT1}, s{sT1}, {AF_OFF + 27*16384:#x}
    s_lshl_b32 s{sT2}, s{sT0}, 12
    s_add_u32 s{sT1}, s{sT1}, s{sT2}
    s_mul_i32 s{sT2}, s{sPI}, {AF_MT}
    s_add_u32 s{sSTB}, s{sT1}, s{sT2}
    s_sub_u32 s{sT2}, 15, s{sPI}
    s_mul_i32 s{sT2}, s{sT2}, {AF_MT}
    s_add_u32 s{sSTA}, s{sT1}, s{sT2}
    """)
    g = [[i] for i in s]
    if grp:
        g += [L(f"s_add_u32 s{sSTA}, s{sSTA}, 2048"), L(f"s_mov_b32 s{sMO}, 1"), L(f"s_mov_b32 s{sKJ}, 0")]
    else:
        g += [L(f"s_cmp_eq_u32 s{sPI}, 7\ns_cselect_b32 s{sMO}, 1, 0"), L(f"s_mov_b32 s{sKJ}, s{sMO}")]
    g += [L(f"s_mov_b32 s{sSIG}, 1")]
    g += [[i] for i in mask_cmps(0, vTMP)]
    return g

def g_loads():
    t = vA[7]
    return L(f"""
    s_and_b32 s{sT0}, s{sW}, 3
    s_lshl_b32 s{sT0}, s{sT0}, 7
    s_add_u32 s{sT0}, s{sT0}, {G_OFF:#x}
    s_sub_u32 s{sT1}, 15, s{sPI}
    s_lshl_b32 s{sT1}, s{sT1}, 9
    s_add_u32 s{sT1}, s{sT1}, s{sT0}
    s_lshl_b32 s{sT2}, s{sP}, 6
    s_add_u32 s{sT1}, s{sT1}, s{sT2}
    v_lshlrev_b32 v{t}, 2, v{vI16}
    buffer_load_dword v{vGA}, v{t}, s[{SWS}:{SWS+3}], s{sT1} offen sc1
    s_lshl_b32 s{sT1}, s{sPI}, 9
    s_add_u32 s{sT1}, s{sT1}, s{sT0}
    buffer_load_dword v{vGB0}, v{t}, s[{SWS}:{SWS+3}], s{sT1} offen sc1
    buffer_load_dword v{vGB1}, v{t}, s[{SWS}:{SWS+3}], s{sT1} offen offset:64 sc1
    """)

def first_stub(name):
    lab = f"{name}_F"
    body = signal(3, f"{lab}_SG", vA[0]) + flag_chk("B", vA[6], 2) + L(f"s_cbranch_vccz {lab}_C") + spin("B", vA[6], 2, lab) + L(f"{lab}_C:")
    lin = signal(3, f"{lab}_SG", vA[0]) + flag_chk("B", vA[6], 2) + g_loads()
    return L(f"{lab}:") + [stamp(7)] + body + [stamp(6)] + g_loads() + L(f"s_mov_b32 s{sSIG}, 0\ns_branch {lab}B"), lin

def q_reads():
    return [rd128(Qreg(qb, u), vQ, (qb * 4 + u) * 1024) for qb in range(2) for u in range(4)]

def kread(n): return rd128(FR + 4 * (n % 8), vK, n * 1024)
def vread(f): return rd128(FR + 4 * (f % 8), vV, f * 1024)

def qk_mfmas(buf, zero_c):
    out = []
    for n in range(16):
        a, u = n >> 2, n & 3
        for qb in range(2):
            c = None if u else (0 if zero_c else NM[qb])
            out.append(mf(Sreg(buf, a, qb), FR + 4 * (n % 8), Qreg(qb, u), c))
    return out

def pv_mfmas(par):
    out = []
    for f in range(16):
        u, b = f >> 3, f & 7
        for qb in range(2):
            pr = (P0R[par] if u == 0 else P1R) + 4 * qb
            out.append(mf(Oreg(b, qb), FR + 4 * (f % 8), pr))
    return out

def softmax_half(buf, hf, pbase):
    pairs = [(a, qb, r) for a in (2 * hf, 2 * hf + 1) for r in (0, 2) for qb in range(2)]
    ops = []
    started = [hf == 1, hf == 1]
    def tail(p):
        a, qb, r = pairs[p]
        e = E + 2 * (p % 4)
        o = []
        if started[qb]:
            o += [I(f"v_add_f32 v{vTS[qb]}, v{vTS[qb]}, v{e}"), I(f"v_add_f32 v{vTS[qb]}, v{vTS[qb]}, v{e+1}")]
        else:
            o += [I(f"v_add_f32 v{vTS[qb]}, v{e}, v{e+1}")]; started[qb] = True
        o.append(cvtpk(pbase + 4 * qb + 2 * (a & 1) + r // 2, e, e + 1))
        return o
    for p, (a, qb, r) in enumerate(pairs):
        e = E + 2 * (p % 4)
        sr = Sreg(buf, a, qb) + r
        ops += [I(f"v_exp_f32 v{e}, v{sr}"), I(f"v_exp_f32 v{e+1}, v{sr+1}")]
        if p >= 1: ops += tail(p - 1)
    ops += [I("s_nop 0")] + tail(len(pairs) - 1)
    return ops

def xlane(op, x, t):
    return [L(f"v_mov_b32 v{t}, v{x}\ns_nop 1\nv_permlane32_swap_b32 v{t}, v{x}\ns_nop 1\n{op} v{x}, v{x}, v{t}"),
            L(f"v_mov_b32 v{t}, v{x}\ns_nop 1\nv_permlane16_swap_b32 v{t}, v{x}\ns_nop 1\n{op} v{x}, v{x}, v{t}")]
flat = lambda g: sum(([x] if isinstance(x, I) else x for x in g), [])

def rowmax(buf, qb, dst):
    regs = [Sreg(buf, a, qb) + r for a in range(4) for r in range(4)]
    s = [I(f"v_max3_f32 v{dst}, v{regs[0]}, v{regs[1]}, v{regs[2]}")]
    for k in range(3, 15, 2):
        s.append(I(f"v_max3_f32 v{dst}, v{dst}, v{regs[k]}, v{regs[k+1]}"))
    s.append(I(f"v_max_f32 v{dst}, v{dst}, v{regs[15]}"))
    return s

def fresh_max(buf):
    B = []
    r0, r1 = rowmax(buf, 0, vA[0]), rowmax(buf, 1, vA[1])
    for a, b in zip(r0, r1): B += [a, b]
    for qb in range(2):
        B += xlane("v_max_f32", vA[qb], vA[2 + qb])
        B += L(f"v_max_f32 v{vA[qb]}, {f2h(-1.0e30)}, v{vA[qb]}")
    for qb in range(2):
        B += [I(f"v_sub_f32 v{Sreg(buf, a, qb)+r}, v{Sreg(buf, a, qb)+r}, v{vA[qb]}") for a in range(2) for r in range(4)]
    for qb in range(2):
        B += [I(f"v_sub_f32 v{Sreg(buf, a, qb)+r}, v{Sreg(buf, a, qb)+r}, v{vA[qb]}") for a in range(2, 4) for r in range(4)]
        B += [I(f"v_sub_f32 v{NM[qb]+r}, 0, v{vA[qb]}") for r in range(4)]
    return B

def mask_block(buf):
    s = []
    for a in range(4):
        for qb in range(2):
            for rr in range(4):
                m = sMASK + 2 * ((a - qb + 1) * 4 + rr)
                r = Sreg(buf, a, qb) + rr
                s.append(I(f"v_cndmask_b32 v{r}, v{r}, v{vNEG}, s[{m}:{m+1}]"))
    return s

def check_ops():
    return L(f"""
    v_max_f32 v{vA[0]}, v{vTS[0]}, v{vTS[1]}
    v_cmp_lt_f32 vcc, s{sTHR}, v{vA[0]}
    """)

def rare(par, with_next, name):
    cur, nxt = par, par ^ 1
    s = L(f"{name}:\ns_nop 7")
    for qb in range(2):
        d = vA[qb]
        s += rowmax(cur, qb, d) + flat(xlane("v_max_f32", d, vA[2]))
        s += L(f"v_max_f32 v{d}, 0, v{d}")
    for qb in range(2):
        d = vA[qb]; f = vA[4 + qb]
        s += L(f"v_exp_f32 v{f}, -v{d}")
        for buf in ((cur, nxt) if with_next else (cur,)):
            for a in range(4):
                for r in range(4):
                    x = Sreg(buf, a, qb) + r
                    s.append(I(f"v_sub_f32 v{x}, v{x}, v{d}"))
        for r in range(4):
            s.append(I(f"v_sub_f32 v{NM[qb]+r}, v{NM[qb]+r}, v{d}"))
        for b in range(8):
            for r in range(4):
                x = Oreg(b, qb) + r
                s.append(I(f"v_mul_f32 v{x}, v{x}, v{f}"))
        s.append(I(f"v_mul_f32 v{vL[qb]}, v{vL[qb]}, v{f}"))
    s += softmax_half(cur, 0, P0R[par]) + softmax_half(cur, 1, P1R)
    s += L(f"s_nop 1\ns_setpc_b64 s[{sRET}:{sRET+1}]")
    return s

def ladd():
    return [I(f"v_add_f32 v{vL[qb]}, v{vL[qb]}, v{vTS[qb]}") for qb in range(2)]

NPRE = 6
def it(name):
    par = {"E1": 0, "O1": 1, "E1s": 0, "O1s": 1, "I0": 0, "I1": 1}[name]
    nx = par ^ 1
    qk = qk_mfmas(nx, name == "O1s")
    pv = pv_mfmas(par)
    fa = [(2 * n - 12, kread(n)) for n in range(NPRE, 16)] + [(2 * (16 + f) - 12, vread(f)) for f in range(0, 6)]
    d = {"E1": v_dma(), "E1s": v_dma(), "O1": k_dma(), "O1s": k_dma()}.get(name) or (k_dma() + v_dma())
    sm = softmax_half(par, 1, P1R)
    cond = {"O1": f"s_cmp_eq_u32 s{sC1}, s{sMO}", "O1s": f"s_cmp_eq_u32 s{sPI}, 7", "I1": f"s_cmp_eq_u32 s{sC2}, 1"}.get(name)
    if cond:
        junk = {"O1": f"s_cmp_eq_u32 s{sC1}, s{sKJ}"}.get(name, cond)
        d = [guarded(0, g) for g in d[:4]] + d[4:]
        fa += [(0, L(junk + "\ns_cselect_b64 vcc, -1, 0"))]
    fa += spread(d, 1, 17) + spread(sm, 0, 29) + [(29, check_ops())]
    if name == "E1s": fa += spread(mask_cmps(1, vA[3]), 2, 26)
    if cond: fa += [(30, L(cond))]
    A = weave(qk, fa)
    rname = "RARE1B" if name == "O1s" else f"RARE{par}"
    mid = L(f"s_cbranch_vccnz {name}_R\n{name}_RB:")
    stubs = L(f"{name}_R:\ns_call_b64 s[{sRET}:{sRET+1}], {rname}") + (L(cond) if cond else []) + L(f"s_branch {name}_RB")
    mstub = []
    if cond:
        mid += L(f"s_cbranch_scc1 {name}_M\n{name}_MB:")
        arm = L(f"s_cmp_eq_u32 s{sP}, 1\ns_cbranch_scc1 {name}_MB") if name == "O1" else []
        arm += L(f"s_mov_b32 s{sSIG}, 1") + HOOK["last_loads"]()
        mstub = L(f"{name}_M:\ns_nop 7") + mask_block(nx) + arm + L(f"s_branch {name}_MB")
    if name == "E1s":
        mid += [I("s_nop 5")] + mask_block(nx)
    kx = {"E1": f"{SLOTB|HALFB:#x}", "O1": f"s{sKX}"}.get(name, f"{SLOTB:#x}")
    vx = {"E1": HALFB, "E1s": HALFB, "O1": SLOTB | HALFB}.get(name, SLOTB)
    fb = [(2 * f - 12, vread(f)) for f in range(6, 16)]
    vm = 4 if name in ("E1", "E1s") else 0
    bar = L(f"""
    s_waitcnt vmcnt({vm}) lgkmcnt(0)
    s_barrier
    v_xor_b32 v{vK}, {kx}, v{vK}
    v_xor_b32 v{vV}, {vx:#x}, v{vV}
    """) + [kread(0), kread(1)]
    sig = []; siglin = []
    if name in ("E1", "E1s"):
        bar += L(f"s_cmp_lg_u32 s{sSIG}, 0\ns_cbranch_scc1 {name}_F\n{name}_FB:")
        sig, siglin = first_stub(name)
        siglin = {0: siglin, 1: siglin}
    if cond:
        bar += L(f"s_cmp_lg_u32 s{sSIG}, 0\ns_cbranch_scc1 {name}_F\n{name}_FB:")
        sig, siglin = HOOK["last_stub"](name)
    fb += [(22, bar)] + [(24 + 2 * j, kread(2 + j)) for j in range(NPRE - 2)]
    if name == "O1s":
        pre = [I(f"v_add_f32 v{vA[6+qb]}, v{vL[qb]}, v{vTS[qb]}") for qb in range(2)] + [I(f"v_mov_b32 v{vL[qb]}, 0") for qb in range(2)]
        fb += spread(pre, 0, 2) + spread(fresh_max(nx), 2, 16) + spread(softmax_half(nx, 0, P0R[nx]), 16, 31)
    else:
        fb += spread(ladd() + softmax_half(nx, 0, P0R[nx]), 0, 30)
    if name == "E1s":
        fb += [(0, L(f"v_add_u32 v{vQ}, {QS - QB_LDS}, v{vQ}"))] + [(1 + 2 * k, r) for k, r in enumerate(q_reads())]
    if name == "O1":
        fb += [(10, L(f"s_cmp_eq_u32 s{sC1}, 1\ns_cselect_b32 s{sKX}, s{sKXL}, {HALFB:#x}")), (29, L(f"s_sub_u32 s{sC1}, s{sC1}, 1\ns_cmp_eq_u32 s{sC1}, 0"))]
    if name == "I1":
        fb += [(29, L(f"s_sub_u32 s{sC2}, s{sC2}, 1\ns_cmp_eq_u32 s{sC2}, 0"))]
    B = weave(pv, fb)
    return dict(A=A, mid=mid, B=B, rstub=stubs, mstub=mstub, sig=sig, siglin=siglin, rname=rname)

def pro():
    qk = qk_mfmas(0, True)
    rd = [(max(-1, 2 * n - 12), kread(n)) for n in range(16)]
    z = [I(f"v_mov_b32 v{O+k}, 0") for k in range(64)] + [I(f"v_mov_b32 v{vL[qb]}, 0") for qb in range(2)] + L(f"v_mov_b32 v{vNEG}, {f2h(-3.0e38)}")
    A = q_reads() + weave(qk, rd + spread(z, 0, 32) + [(20, L(f"v_xor_b32 v{vK}, {HALFB:#x}, v{vK}"))]
                                         + [(20 + 2 * n, kread(n)) for n in range(NPRE)] + [(30, L(f"s_cmp_eq_u32 s{sC1}, 0"))])
    mid = L("s_nop 1\ns_cbranch_scc1 PRO_M\nPRO_MB:")
    B = flat(fresh_max(0)) + softmax_half(0, 0, P0R[0]) + poll_load("B", vA[6], "p2")
    B += [stamp(8), I("s_barrier"), stamp(22)] + L(f"s_cmp_eq_u32 s{sC1}, 0")
    mstub = L("PRO_M:\ns_nop 4") + mask_block(0) + L("s_branch PRO_MB")
    M = I("; @@PM")
    lin = resolve_vm(A + [M] + B)
    k = lin.index(M)
    return dict(A=lin[:k], mid=mid, B=lin[k+1:], mstub=mstub)

def bepi():
    s = flat(xlane("v_add_f32", vA[6], vA[0]) + xlane("v_add_f32", vA[7], vA[1]))
    s += L(f"""
    v_rcp_f32 v{vA[6]}, v{vA[6]}
    v_rcp_f32 v{vA[7]}, v{vA[7]}
    s_nop 0
    v_mul_f32 v{vA[6]}, v{vA[6]}, v{vGB0}
    v_mul_f32 v{vA[7]}, v{vA[7]}, v{vGB1}
    """)
    k = 0
    for u in range(4):
        for qb in range(2):
            x, y = Oreg(2 * u, qb), Oreg(2 * u + 1, qb)
            s += [I(f"v_mul_f32 v{x+r}, v{x+r}, v{vA[6+qb]}") for r in range(4)] + [I(f"v_mul_f32 v{y+r}, v{y+r}, v{vA[6+qb]}") for r in range(4)]
            tmp = [40, 44, 48, 52, 88, 92, 120, 124][k % 8]; k += 1
            s += pack2(tmp, x, y)
            s.append(I(f"buffer_store_dwordx4 v[{tmp}:{tmp+3}], v{vD}, s[{SWS}:{SWS+3}], s{sSTB} offen offset:{qb*2048 + (u&1)*1024} sc1"))
            s += [I(f"v_mov_b32 v{x+r}, 0") for r in range(4)] + [I(f"v_mov_b32 v{y+r}, 0") for r in range(4)]
        if u == 1: s.append(I(f"s_add_u32 s{sSTB}, s{sSTB}, 16384"))
    s += [stamp(23)]
    return s

def fin(p, d1, p3_pre, p3_head):
    A = [stamp(24)] + [vread(f) for f in range(6)]
    A += weave(softmax_half(0, 1, P1R), spread(d1, 2, 40)) + check_ops()
    A += L(f"""
    s_and_b32 s{sT0}, s{sW}, 3
    s_lshl_b32 s{sEXW}, s{sT0}, 13
    s_add_u32 s{sEXW}, s{sEXW}, {32768 + p*65536}
    s_xor_b32 s{sEXR}, s{sEXW}, {SLOTB:#x}
    s_lshl_b32 s{sMLW}, s{sW}, 9
    s_add_u32 s{sMLW}, s{sMLW}, {ML_LDS}
    s_lshl_b32 s{sMLR}, s{sT0}, 9
    s_add_u32 s{sMLR}, s{sMLR}, {ML_LDS + (1-p)*2048}
    """)
    mid = L(f"s_cbranch_vccnz FIN{p}_R\nFIN{p}_RB:")
    rstub = L(f"FIN{p}_R:\ns_call_b64 s[{sRET}:{sRET+1}], RARE0B\ns_branch FIN{p}_RB")
    post = ladd() + xlane("v_add_f32", vL[0], vA[0]) + xlane("v_add_f32", vL[1], vA[1])
    aW, aR, mW_, mR_ = vA[4], vA[5], vA[6], vA[7]
    post += L(f"""
    v_add_u32 v{aW}, s{sEXW}, v{vD}
    v_add_u32 v{aR}, s{sEXR}, v{vD}
    v_lshrrev_b32 v{mR_}, 1, v{vD}
    v_add_u32 v{mW_}, s{sMLW}, v{mR_}
    v_add_u32 v{mR_}, s{sMLR}, v{mR_}
    v_mov_b32 v{E}, v{NM[1-p]}
    v_mov_b32 v{E+1}, v{vL[1-p]}
    ds_write_b64 v{mW_}, v[{E}:{E+1}]
    """)
    B = [stamp(60)] + weave(pv_mfmas(0), [(2 * f - 12, vread(f)) for f in range(6, 16)] + spread(post, 0, 20) + spread(p3_pre, 20, 30))
    B += [stamp(61)] + L("s_waitcnt lgkmcnt(0)\ns_barrier") + [stamp(62)] + L(f"""
    ds_read_b64 v[{E+4}:{E+5}], v{mR_}
    s_nop 4
    """)
    X = S[0]
    F2 = vA[0]
    B += [I(f"ds_write_b128 v{aW}, v[{Oreg(b, 1-p)}:{Oreg(b, 1-p)+3}] offset:{b*1024}") for b in range(8)]
    B += L(f"""
    v_min_f32 v{E}, v{NM[p]}, v{E+4}
    v_sub_f32 v{E+1}, v{E}, v{NM[p]}
    v_sub_f32 v{E}, v{E}, v{E+4}
    v_exp_f32 v{E+1}, v{E+1}
    v_exp_f32 v{E}, v{E}
    s_nop 0
    v_mul_f32 v{E+3}, v{vL[p]}, v{E+1}
    v_fma_f32 v{E+3}, v{E+5}, v{E}, v{E+3}
    v_rcp_f32 v{E+3}, v{E+3}
    s_nop 0
    v_mul_f32 v{E+3}, v{E+3}, v{vGA}
    v_mul_f32 v{E+1}, v{E+1}, v{E+3}
    v_mul_f32 v{F2}, v{E}, v{E+3}
    """)
    mul = [I(f"v_mul_f32 v{Oreg(b,p)+r}, v{Oreg(b,p)+r}, v{E+1}") for b in range(8) for r in range(4)]
    B += mul[:8] + [stamp(63)] + L("s_waitcnt lgkmcnt(0)\ns_barrier") + [stamp(64)]
    B += [rd128(X + 4 * b, aR, b * 1024) for b in range(8)] + mul[8:]
    B += [waitvm("d1", lgkm=True), I("s_barrier"), stamp(25)]
    T = []
    for u in range(4):
        for b in (2 * u, 2 * u + 1):
            o = Oreg(b, p)
            T += [I(f"v_fma_f32 v{o+r}, v{X+4*b+r}, v{F2}, v{o+r}") for r in range(4)]
        tmp = Oreg(4 + u, 1 - p)
        T += pack2(tmp, Oreg(2 * u, p), Oreg(2 * u + 1, p))
        if u == 2: T.append(I(f"s_add_u32 s{sSTA}, s{sSTA}, 16384"))
        T.append(I(f"buffer_store_dwordx4 v[{tmp}:{tmp+3}], v{vD}, s[{SWS}:{SWS+3}], s{sSTA} offen offset:{(u&1)*1024} sc1 ; @ctx"))
    B += weave(T, spread(p3_head, 0, 44)) + [stamp(26)]
    return dict(A=A, mid=mid, B=B, rstub=rstub, rname="RARE0B")
```

```python
from fz2 import *

NSLOT, NST = 4, 23
AOFF = [0, 16384, 32768, 49152]
WOFF = [65536, 131072, 86016, 106496]
sC, sMT, sNT, soD, mD, so2, sPB, sCNT = 60, 61, 62, 63, 64, 65, 66, 67
sMSK, sMH, sNH = 68, 71, 72
SOUT = 76
pDW = [96, 97, 98, 99, 100]
pA = [101, 104, 105, 106]
pW = [[102, 103], [107, 108], [109, 110], [111, 112]]
pOM = [113, 114, 115, 116]
pT = [117, 118, 119, 120]
pPL = 122
PSET = [24, 60]
PACC = 128
PX = 208
acc = lambda j, q: PACC + (q * 5 + j) * 4

def p3_scalars():
    return L(f"""
    s_and_b32 s{sC}, s{sXCD}, 3
    s_lshr_b32 s{sMT}, s{sXCD}, 2
    s_lshl_b32 s{sMT}, s{sMT}, 3
    s_add_u32 s{sMT}, s{sMT}, s{sPI}
    s_and_b32 s{sNT}, s{sSLOT}, 3
    s_lshr_b32 s{sMH}, s{sW}, 1
    s_and_b32 s{sMH}, s{sMH}, 1
    s_and_b32 s{sNH}, s{sW}, 1
    """)

def stash_addr(d):
    return L(f"""
    s_lshl_b32 s{d}, s2, 3
    s_add_u32 s{d}, s{d}, s{sW}
    s_lshl_b32 s{d}, s{d}, 11
    s_add_u32 s{d}, s{d}, {STASH_OFF:#x}
    """)

def p3_stash():
    B = 224
    t0, t1, t2, t3 = B + 8, B + 9, B + 10, B + 11
    m = 46
    s = L(f"""
    s_mul_i32 s{sT0}, s{sW}, 320
    s_mov_b32 s{sT1}, 3277
    """)
    for n in range(5):
        s += L(f"""
        v_add_u32 v{t0}, s{sT0}, v{vLane}
        v_add_u32 v{t0}, {64*n}, v{t0}
        v_mul_lo_u32 v{t1}, v{t0}, s{sT1}
        v_lshrrev_b32 v{t1}, 16, v{t1}
        v_mul_u32_u24 v{t2}, 20, v{t1}
        v_sub_u32 v{t2}, v{t0}, v{t2}
        v_lshrrev_b32 v{t3}, 1, v{t1}
        v_and_b32 v{t3}, 2, v{t3}
        v_xor_b32 v{t2}, v{t2}, v{t3}
        v_mul_u32_u24 v{t1}, 1280, v{t1}
        v_lshl_add_u32 v{B+n}, v{t2}, 4, v{t1}
        """)
        if 0 < n < 4: s += L(f"v_subrev_u32 v{B+n}, {n*1024}, v{B+n}")
    s += L(f"""
    s_bfe_u32 s{sT0}, s{sW}, 0x10001
    s_lshl_b32 s{sT0}, s{sT0}, 13
    s_lshl_b32 s{sT1}, s{sP}, 10
    s_add_u32 s{sT0}, s{sT0}, s{sT1}
    v_add_u32 v{B+5}, s{sT0}, v{vD}
    s_and_b32 s{sT2}, s{sW}, 1
    s_mul_i32 s{sT0}, s{sP}, {32*320}
    s_mul_i32 s{sT1}, s{sT2}, 160
    s_add_u32 s{sT0}, s{sT0}, s{sT1}
    s_add_u32 s{sT0}, s{sT0}, {WOFF[0]}
    v_lshrrev_b32 v{t0}, 2, v{vI16}
    v_lshl_add_u32 v{t0}, v{vG}, 2, v{t0}
    v_mul_u32_u24 v{t0}, 320, v{t0}
    v_and_b32 v{t1}, 3, v{vI16}
    v_lshl_add_u32 v{t0}, v{t1}, 3, v{t0}
    v_add_u32 v{t0}, s{sT0}, v{t0}
    v_and_b32 v{t1}, 1, v{vG}
    v_lshlrev_b32 v{t1}, 5, v{t1}
    v_add_u32 v{t2}, v{t0}, v{t1}
    v_sub_u32 v{t3}, v{t0}, v{t1}
    s_cmp_eq_u32 s{sT2}, 0
    s_cselect_b64 s[{m}:{m+1}], -1, 0
    v_cndmask_b32 v{B+6}, v{t3}, v{t2}, s[{m}:{m+1}]
    v_cndmask_b32 v{B+7}, v{t2}, v{t3}, s[{m}:{m+1}]
    """) + stash_addr(sT0) + L(f"""
    buffer_store_dwordx4 v[{B}:{B+3}], v{vD}, s[{SWS}:{SWS+3}], s{sT0} offen{" sc1" if "stsc" in OPT else ""}
    buffer_store_dwordx4 v[{B+4}:{B+7}], v{vD}, s[{SWS}:{SWS+3}], s{sT0} offen offset:1024{" sc1" if "stsc" in OPT else ""}
    """)
    if "nost" in OPT: s = s[:-2]
    return s

def last_loads():
    t0 = pT[0]
    return p3_scalars() + stash_addr(sT0) + L(f"""
    buffer_load_dwordx4 v[96:99], v{vD}, s[{SWS}:{SWS+3}], s{sT0} offen sc1
    buffer_load_dwordx4 v[100:103], v{vD}, s[{SWS}:{SWS+3}], s{sT0} offen offset:1024 sc1
    s_lshl_b32 s{sT0}, s{sMT}, 9
    s_lshl_b32 s{sT1}, s{sMH}, 8
    s_add_u32 s{sT0}, s{sT0}, s{sT1}
    s_add_u32 s{sT0}, s{sT0}, {G_OFF + 8192:#x}
    v_lshlrev_b32 v{t0}, 2, v{vI16}
    """) + poll_load("C", vQ)

def om_loads():
    return [I(f"buffer_load_dword v{pOM[q]}, v{pT[0]}, s[{SWS}:{SWS+3}], s{sT0} offen offset:{q*64} sc1") for q in range(4)]

def dma_scalars(kp):
    if kp == 0:
        return L(f"""
        s_mul_i32 s{sT0}, s{sNT}, 320
        s_mul_i32 s{soD}, s{sC}, {7*64*1280}
        s_add_u32 s{soD}, s{soD}, s{sT0}
        s_mul_i32 s{so2}, s{sC}, {16*64*1280}
        s_add_u32 s{so2}, s{so2}, s{sT0}
        s_mul_i32 s{mD}, s{sW}, 5120
        """)
    return L(f"""
    s_mul_i32 s{sT0}, s{sMT}, {AF_MT}
    s_add_u32 s{sT0}, s{sT0}, {AF_OFF:#x}
    s_sub_u32 s{mD}, s{sW}, 4
    s_lshl_b32 s{mD}, s{mD}, 12
    s_add_u32 s{sT0}, s{sT0}, s{mD}
    s_mul_i32 s{soD}, s{sC}, {7*16384}
    s_add_u32 s{soD}, s{soD}, s{sT0}
    s_lshl_b32 s{so2}, s{sC}, 18
    s_add_u32 s{so2}, s{so2}, s{sT0}
    s_add_u32 s{so2}, s{so2}, {27*16384}
    """)

def last_stub(name):
    lab = f"{name}_F"
    chk = flag_chk("C", vQ, 3)
    part = lambda kp: om_loads() + dma_scalars(kp) + flat(st_dma(kp, 0))
    groups = {"O1": (0,), "O1s": (1,), "I1": (0, 1)}[name]
    code = L(f"{lab}:") + chk + L(f"s_cbranch_vccz {lab}_C") + spin("C", vQ, 3, lab) + L(f"{lab}_C:")
    if len(groups) == 2:
        code += L(f"s_cmp_eq_u32 s{sP}, 0\ns_cbranch_scc1 {lab}_0") + part(1) + L(f"s_branch {lab}B\n{lab}_0:") + part(0)
    else:
        code += part(groups[0])
    return code + L(f"s_branch {lab}B"), {kp: chk + part(kp) for kp in groups}

def st_dma(kp, st):
    tag = f"d{st}"
    so = soD if st < 7 else so2
    if kp == 0:
        buf = WOFF[st % NSLOT]
        R = SWD if st < 7 else SWO
        g = dma4(f"s_add_u32 m0, s{mD}, {buf}", pDW, R, so, tag, 0)
        g += [[I(f"s_add_u32 m0, s{mD}, {buf + 4096}"), I("s_nop 0"), dma(pDW[4], R, so, 0, tag), I(f"s_add_u32 s{so}, s{so}, {64*1280}")]]
    else:
        g = dma4(f"s_add_u32 m0, s{mD}, {AOFF[st % NSLOT]}", [vD] * 4, SWS, so, tag, 16384, " sc1")
        if st == 6: g[0] = L(f"s_cmp_eq_u32 s{sC}, 3\ns_cselect_b32 s{soD}, 0x70000000, s{soD}") + g[0]
    return g

def setup_rd():
    g = []
    for k in range(1, NSLOT):
        g += L(f"""
        v_add_u32 v{pA[k]}, {AOFF[k]}, v{pA[0]}
        v_add_u32 v{pW[k][0]}, {WOFF[k]-WOFF[0]}, v{pW[0][0]}
        v_add_u32 v{pW[k][1]}, {WOFF[k]-WOFF[0]}, v{pW[0][1]}
        """)
    return g

def reads(st):
    b = PSET[st % 2]; k = st % NSLOT
    a = lambda q: rd128(b + 4 * q, pA[k], q * 2048)
    w = lambda j: [rdtr(b + 16 + 4 * j, pW[k][j & 1], j * 32), rdtr(b + 16 + 4 * j + 2, pW[k][j & 1], j * 32 + 5120)]
    return w(0) + [a(0)] + w(1) + w(2) + w(3) + w(4) + [a(1), a(2), a(3)]

def mfmas(st):
    b = PSET[st % 2]
    return [mf(acc(j, q), b + 16 + 4 * j, b + 4 * q, 0 if st == 0 else None) for q in range(4) for j in range(5)]

BARPOS = 2
CHK, CHL, CH2 = 4, 6, 11
def p3_head(kp):
    d = st_dma(kp, 2)
    r = [[i] for i in reads(0)]
    out = []
    for k in range(max(len(d), len(r))): out += d[k:k+1] + r[k:k+1]
    return out

def p3_main(kp):
    s = []
    for st in range(NST):
        f = []
        w = [waitvm(f"d{st+1}" if st != 1 else "ctx", lgkm=True)] if st + 1 < NST else [I("s_waitcnt lgkmcnt(0)")]
        if st == 0: w = [I("s_waitcnt lgkmcnt(0)")]
        dm = lambda lo, hi: sum((st_dma(kp, x) for x in range(lo, hi)), [])
        late = []
        if kp == 1 and st == CHL:
            STUBS.append(L("PL3_S:") + spin("D", pPL, 4, "PL3"))
            late = guarded(1, L("s_branch PL3_S\nPL3_C:\ns_mov_b64 vcc, -1") + flat(dm(7, CHL + NSLOT)))
            w = late + w
        w += [I("s_barrier")]
        if st == 1 and kp == 0: w += signal(4, "SIG4", pT[1])
        if st == 7: w += [stamp(27)]
        if st in (0, 1, 2, 3, 4, 5, 6): w += [stamp(44 + st)]
        f.append((BARPOS, w))
        if st + 1 < NST: f += spread(reads(st + 1), BARPOS, 18)
        d = dm(st + NSLOT, st + NSLOT + 1) if st + NSLOT < NST else []
        if st < 3: d = dm(st + 3, st + 4)
        if st == 3: d = dm(6, 8 - kp)
        if kp == 1:
            if st == CHK - 1: f.append((17, poll_load("D", pPL, "p3")))
            if st == CHK:
                f.append((BARPOS, [waitvm("p3")] + flag_chk("D", pPL, 4)))
                d = [guarded(0, g) for g in dm(7, CHK + NSLOT + 1)]
            if CHK < st < CHL: d = [guarded(0, g) for g in d]
            if st == CH2 - 1: f.append((10, poll_load("E", pPL, "p4")))
            if st == CH2: f.append((BARPOS, poll_check("E", pPL, "p4", 4, "PL4")))
        if d: f += spread(d, BARPOS + 1, 17)
        if st == 7 or st == 6:
            for k in range(20):
                q, j = divmod(k, 5)
                ops = [I(f"v_mul_f32 v{acc(j,q)+r}, v{acc(j,q)+r}, v{pOM[q]}") for r in range(4)]
                if st == 6 and k < 3: f.append((17 + k, ops))
                if st == 7 and k >= 3: f.append((k - 3, ops))
        s += weave(mfmas(st), f)
    return s

def epilogue(kp):
    t0, t1, t2, t3 = pT
    X = PX
    s = [stamp(28)] + L(f"""
    s_mul_i32 s{sT0}, s{sW}, 10240
    v_add_u32 v{t0}, s{sT0}, v{vD}
    s_xor_b32 s{sT1}, s{sW}, 4
    s_mul_i32 s{sT1}, s{sT1}, 10240
    v_add_u32 v{t1}, s{sT1}, v{vD}
    s_lshl_b32 s{sPB}, s{sMT}, 2
    s_add_u32 s{sPB}, s{sPB}, s{sNT}
    s_mul_i32 s{sPB}, s{sPB}, {4*PART_WG}
    s_and_b32 s{sT0}, s{sW}, 3
    s_mul_i32 s{sT0}, s{sT0}, 3072
    s_add_u32 s{sPB}, s{sPB}, s{sT0}
    s_add_u32 s{sPB}, s{sPB}, {PART_OFF:#x}
    s_mov_b32 s{sMSK}, 0xfffffffe
    """) + srd(SOUT, sOUTP, SZ_OUT)
    snd = [2 * (1 - kp), 2 * (1 - kp) + 1]; own = [2 * kp, 2 * kp + 1]
    k = 0
    for q in snd:
        for j in range(5):
            s.append(I(f"ds_write_b128 v{t0}, v[{acc(j,q)}:{acc(j,q)+3}] offset:{k*1024}")); k += 1
    s += L("s_waitcnt lgkmcnt(0)\ns_barrier") + [stamp(42)]
    s += [rd128(X + 4 * k, t1, k * 1024) for k in range(10)]
    k = 0
    for q in own:
        for j in range(5):
            s += [I(f"v_add_f32 v{acc(j,q)+r}, v{acc(j,q)+r}, v{X+4*k+r}") for r in range(4)]; k += 1
    A = s
    sends = []
    for q in own:
        y = X if q == own[0] else X + 12
        b = L(f"""
        s_sub_u32 s{sT0}, s{sC}, {q+1}
        s_and_b32 s{sT0}, s{sT0}, 3
        s_mul_i32 s{sT0}, s{sT0}, {4*3072}
        s_add_u32 s{sT0}, s{sT0}, s{sPB}
        s_add_u32 s{sT0}, s{sT0}, {q*PART_WG}
        """)
        b += pack2(y, acc(0, q), acc(1, q)) + pack2(y + 4, acc(2, q), acc(3, q))
        b += [I(f"v_min_u32 v{y+r}, s{sMSK}, v{y+r}") for r in range(8)]
        b += [I(f"v_min_u32 v{y+8+r}, s{sMSK}, v{acc(4,q)+r}") for r in range(4)]
        b += [I(f"buffer_store_dwordx4 v[{y+4*c}:{y+4*c+3}], v{vD}, s[{SWS}:{SWS+3}], s{sT0} offen offset:{c*1024} sc1") for c in range(3)]
        sends.append((q, b))
    mv = [I(f"v_mov_b32 v{acc(j,own[0])+r}, v{acc(j,own[1])+r}") for j in range(5) for r in range(4)]
    R = 24
    pre = [stamp(43)] + L(f"""
    s_mul_i32 s{sT0}, s{sC}, {PART_WG}
    s_add_u32 s{sPB}, s{sPB}, s{sT0}
    s_add_u32 s{sT1}, s{sPB}, {4*3072}
    s_add_u32 s{sT2}, s{sPB}, {8*3072}
    s_mov_b32 s{sCNT}, 0
    s_lshl_b32 s{sT0}, s{sMT}, 7
    s_lshl_b32 s{so2}, s{sMH}, 6
    s_add_u32 s{sT0}, s{sT0}, s{so2}
    s_lshl_b32 s{so2}, s{sC}, 4
    s_add_u32 s{sT0}, s{sT0}, s{so2}
    s_mul_i32 s{sT0}, s{sT0}, 1280
    s_mul_i32 s{so2}, s{sNT}, 320
    s_add_u32 s{sT0}, s{sT0}, s{so2}
    s_mul_i32 s{so2}, s{sNH}, 160
    s_add_u32 s{so2}, s{sT0}, s{so2}
    v_mul_u32_u24 v{t0}, 1280, v{vI16}
    v_and_b32 v{t1}, 1, v{vG}
    v_lshlrev_b32 v{t1}, 5, v{t1}
    v_lshrrev_b32 v{t2}, 1, v{vG}
    v_lshl_add_u32 v{t1}, v{t2}, 4, v{t1}
    v_add_u32 v{t1}, v{t0}, v{t1}
    v_lshl_add_u32 v{t0}, v{vG}, 3, v{t0}
    """)
    poll = []
    for si, so in enumerate((sPB, sT1, sT2)):
        poll += [I(f"buffer_load_dwordx4 v[{R+12*si+4*c}:{R+12*si+4*c+3}], v{vD}, s[{SWS}:{SWS+3}], s{so} offen offset:{c*1024} sc1") for c in range(3)]
    poll += L(f"s_add_u32 s{sCNT}, s{sCNT}, 1\ns_waitcnt vmcnt(0)")
    poll += [I(f"v_max3_u32 v{t2}, v{R}, v{R+1}, v{R+2}")] + [I(f"v_max3_u32 v{t2}, v{t2}, v{R+k}, v{R+k+1}") for k in range(3, 35, 2)] + [I(f"v_max_u32 v{t2}, v{t2}, v{R+35}")]
    poll += L(f"""
    v_cmp_eq_u32 vcc, -1, v{t2}
    s_cmp_ge_u32 s{sCNT}, 0x20000
    """)
    o = own[0]
    fn = [stamp(29)] + L(f"s_mov_b32 s{sMSK}, 0xffff0000")
    for si in range(3):
        for c in range(2):
            for h in range(4):
                r = R + 12 * si + 4 * c + h
                d = acc(2 * c + (h >> 1), o) + 2 * (h & 1)
                fn += L(f"""
                v_lshlrev_b32 v{t2}, 16, v{r}
                v_and_b32 v{t3}, s{sMSK}, v{r}
                v_add_f32 v{d}, v{d}, v{t2}
                v_add_f32 v{d+1}, v{d+1}, v{t3}
                """)
        fn += [I(f"v_add_f32 v{acc(4,o)+r}, v{acc(4,o)+r}, v{R+12*si+8+r}") for r in range(4)]
    y = X
    fn += pack2(y, acc(0, o), acc(1, o)) + pack2(y + 4, acc(2, o), acc(3, o)) + [cvtpk(y + 8, acc(4, o), acc(4, o) + 1), cvtpk(y + 9, acc(4, o) + 2, acc(4, o) + 3)]
    fn += L(f"""
    s_nop 1
    v_permlane16_swap_b32 v{y}, v{y+2}
    v_permlane16_swap_b32 v{y+1}, v{y+3}
    v_permlane16_swap_b32 v{y+4}, v{y+6}
    v_permlane16_swap_b32 v{y+5}, v{y+7}
    s_nop 1
    buffer_store_dwordx4 v[{y}:{y+3}], v{t1}, s[{SOUT}:{SOUT+3}], s{so2} offen
    buffer_store_dwordx4 v[{y+4}:{y+7}], v{t1}, s[{SOUT}:{SOUT+3}], s{so2} offen offset:64
    buffer_store_dwordx2 v[{y+8}:{y+9}], v{t0}, s[{SOUT}:{SOUT+3}], s{so2} offen offset:128
    """)
    return A, sends, mv, pre, poll, fn
```

```python
import sys
from fz3 import *
import fz1
HDR = open("gated_mix__compressed_kv_cla__geglu_ffn__prompt.s.ref").read().split("; Override")[0]
NAME = "gated_mix__compressed_kv_cla__geglu_ffn__prompt_kernel"

def emit():
    del STUBS[:]
    HOOK.update(last_loads=last_loads, last_stub=last_stub)
    s0 = setup()
    pro1 = flat(kv_dma(0)) + (flat(kv_dma(1)) + setup_late() if "oldord" in OPT else setup_late() + flat(kv_dma(1))) + (pf_code() if "nopfc" not in OPT else []) + sum((pf_item(0, it) for it in SCHED.get("s", [])), []) + kv_addr() + p3_stash() + [waitvm("kv0"), I("s_barrier"), stamp(1)] + kv_reads(0, 0, 0)
    M1, M2, M3 = I("; @@A"), I("; @@B"), I("; @@C")
    front = {}
    for kind in range(3):
        grp = 1 if kind == 1 else 0
        extra = {7: [(40, att_scalars())], 9: spread(att_setup(grp), 21, 47)}
        body = pro1 + [M1] + kv_part(kind) + [M2] + qg_part(kind, k_dma("k0"), v_dma("v0") + k_dma("k1"), extra)
        body += [I("s_nop 1"), stamp(20)] + (geglu() if kind == 0 else qepi() if kind == 1 else [])
        body += [waitvm("v0", lgkm=True), I("s_barrier"), stamp(21)] + [M3]
        body = resolve_vm(body)
        body, q = add_lgkm(body, slack=1)
        front[kind] = (body, q)
    q0 = front[0][1]
    assert qsig(q0) == qsig(front[1][1]) == qsig(front[2][1])
    W = lambda seq, q: add_lgkm(seq, q, slack=1)
    PR = pro(); PR["A"], q = W(PR["A"], q0); PR["B"], qpro = W(PR["B"], q)
    t = it("O1"); _, q = W(t["A"], qpro); _, qloop = W(t["B"], q)
    assert len(qloop) == NPRE and qsig(qpro) == qsig(qloop)[NPRE - len(qpro):], (qsig(qpro), qsig(qloop))
    IT = {}
    for n in ("E1", "O1", "E1s", "O1s", "I0", "I1"):
        t = it(n); t["A"], q = W(t["A"], qloop); t["B"], q = W(t["B"], q)
        assert qsig(q) == qsig(qloop), n
        IT[n] = t
    BE = bepi()
    RA = {"RARE0": rare(0, True, "RARE0"), "RARE1": rare(1, True, "RARE1"), "RARE1B": rare(1, False, "RARE1B"), "RARE0B": rare(0, False, "RARE0B")}
    back = {}
    for p in range(2):
        F = fin(p, st_dma(p, 1), setup_rd(), p3_head(p))
        A, sends, mv, pre, poll, fn = epilogue(p)
        MK = I("; @@D")
        lin = resolve_vm(F["A"] + [MK] + F["B"] + p3_main(p) + A)
        lin, q = W(lin, qloop)
        assert not q
        k = lin.index(MK)
        F["A"], F["B"] = lin[:k], lin[k + 1:]
        back[p] = (F, sends, mv, pre, poll, fn)
    seg = lambda t: t["A"] + t["mid"] + t["B"]
    def segx(t, r=False, m=False, first=False, p=0):
        out = list(t["A"])
        for i in t["mid"]:
            out.append(i)
            if r and "vccnz" in i.t: out += RA[t.get("rname", "RARE0")]
            if m and "scc1" in i.t: out += t["mstub"]
        if not first: return out + t["B"]
        for i in t["B"]:
            out.append(i)
            if i.kind == "br" and "_F" in i.t: out += t["siglin"][p]
        return out
    for kind in range(3):
        p = 1 if kind == 1 else 0
        F, sends, mv, pre, poll, fn = back[p]
        tails = [sends[0][1] + sends[1][1] + mv + pre + poll + poll + fn, sends[1][1] + pre + poll + fn, sends[0][1] + mv + pre + poll + fn]
        hd = s0 + front[kind][0]
        for v, (r, m) in enumerate(((False, False), (True, False), (False, True), (True, True))):
            X = lambda n, first=False: segx(IT[n], r, (m and n in ("O1",) and p == 1) or (first and n in ("O1", "O1s", "I1")), first, p)
            path = hd + segx(PR, False, m) + X("E1", True) + X("O1") + X("E1") + X("O1")
            if p: path += X("E1s") + X("O1s") + BE
            path += X("I0", True) + X("I1") + X("I0") + X("I1", True) + segx(F, r) + tails[v % 3]
            verify(path, f"path kind{kind} v{v}")
            path = hd + segx(PR, False, m) + (X("E1s", True) + X("O1s", True) + BE if p else X("E1", True) + X("O1", True)) + segx(F, r)[:400]
            verify(path, f"path2 kind{kind} v{v}")
    b0 = front[0][0]
    a1 = b0.index(M1)
    part = lambda kind, a, b: front[kind][0][front[kind][0].index(a) + 1: front[kind][0].index(b)]
    for kind in (1, 2):
        assert [i.t for i in front[kind][0][:a1]] == [i.t for i in b0[:a1]]
        assert [i.t for i in front[kind][0][front[kind][0].index(M3):]] == [i.t for i in b0[b0.index(M3):]]
    s = L("s_cmp_lt_u32 s2, 256\ns_cbranch_scc1 K_GO\ns_endpgm\nK_GO:") + s0[2:] + b0[:a1] + L(f"s_cmp_ge_u32 s{sW}, 4\ns_cbranch_scc1 K_V\ns_cmp_eq_u32 s{sVALID}, 0\ns_cbranch_scc1 K_G")
    s += part(0, M1, M3) + L("s_branch K_ATT\nK_G:") + part(2, M1, M3) + L("s_branch K_ATT\nK_V:") + part(1, M1, M3)
    s += L("K_ATT:") + b0[b0.index(M3) + 1:] + seg(PR) + L("s_cbranch_scc1 K_E1S\n.p2align 6\nK_L1:")
    s += seg(IT["E1"]) + seg(IT["O1"]) + L(f"s_cbranch_scc0 K_L1\ns_cmp_eq_u32 s{sP}, 0\ns_cbranch_scc1 K_PH2\nK_E1S:")
    s += seg(IT["E1s"]) + seg(IT["O1s"]) + BE
    s += L(f"K_PH2:\ns_cmp_eq_u32 s{sC2}, 0\ns_cbranch_scc1 K_FIN\n.p2align 6\nK_L2:") + seg(IT["I0"]) + seg(IT["I1"]) + L("s_cbranch_scc0 K_L2")
    s += L(f"K_FIN:\ns_cmp_eq_u32 s{sP}, 1\ns_cbranch_scc1 K_FIN1")
    stubs = PR["mstub"] + sum((IT[n]["rstub"] + IT[n]["mstub"] + IT[n]["sig"] for n in IT), []) + sum(RA.values(), [])
    for p in range(2):
        F, sends, mv, pre, poll, fn = back[p]
        c = seg(F)
        for q, b in sends:
            c += L(f"s_cmp_eq_u32 s{sC}, {q}\ns_cbranch_scc1 P3_S{q}") + b + L(f"P3_S{q}:")
        c += L(f"""
        s_lshr_b32 s{sT0}, s{sC}, 1
        s_cmp_lg_u32 s{sT0}, {p}
        s_cbranch_scc1 K_END
        s_bitcmp0_b32 s{sC}, 0
        s_cbranch_scc1 P3_R{p}
        """) + mv + L(f"P3_R{p}:") + pre + L(f"P3_POLL{p}:") + poll + L(f"""
        s_cbranch_scc1 P3_GO{p}
        s_cbranch_vccnz P3_POLL{p}
        P3_GO{p}:
        """) + fn + L("s_branch K_END")
        s += c
        if p == 0: s += stubs + back[0][0]["rstub"] + back[1][0]["rstub"] + sum(STUBS, []) + L("K_FIN1:")
    s += L("K_END:")
    return s

def main(out, opts):
    dg = "diag" in opts
    s = diag_expand(emit(), 0, dg)
    s = [i for i in s if not i.t.startswith("; @@")]
    print(len(s), "instructions")
    body = kernel(NAME, s)
    head = "; @launch grid=(256,1,1) block=(512,1,1) lds=163840" if "single" in opts else f"; @launch kernel={NAME} grid=(256,1,1) block=(512,1,1) lds=163840"
    open(out, "w").write(HDR + head + '\n.amdgcn_target "amdgcn-amd-amdhsa--gfx950"\n' + body)
if __name__ == "__main__":
    main(sys.argv[1], sys.argv[2:])
```

```python
from common import *
import struct, re
def f2h(x):
    return "0x%08x" % struct.unpack("<I", struct.pack("<f", x))[0]

sW, sXCD, sSLOT, sH, sPI = 3, 4, 5, 6, 7
SWS, SDBG, SWD, SWO = 8, 12, 16, 20
sT0, sT1, sT2, sT3 = 24, 25, 26, 27
sP = 28
sFLAG = 29
sPC = 30
soC, soW, soX, soG = 32, 33, 34, 35
mA, mWk = 36, 37
sFB, sST, sVALID = 39, 40, 31
sOUTP = 42
sGI = 41
sNL = 38
sCLK = 44
SX, SC, SW1, SW2, SGW = 60, 64, 68, 72, 76
P = 80
vLane, vI16, vG = 1, 2, 3
vMAP = 1
vDC = [5, 6, 7, 30]
vDW = [8, 9, 10, 11]
vRA = [[12, 13], [14, 15]]
vRW = [[16, 17, 18, 19], [20, 21, 22, 23]]
vDX = [24, 25, 26, 27]
vPOLL, vTMP = 28, 29
vD = 4
vT = 31
SET = [32, 80]
ACC = 128
PART_WG = 36864
QS = 131072
PFV = 92

def setup():
    s = L(f"""
    s_cmp_ge_u32 s2, 256
    s_cbranch_scc1 K_END
    s_load_dwordx4 s[{P}:{P+3}], s[0:1], {A_X}
    s_load_dwordx4 s[{P+4}:{P+7}], s[0:1], {A_WUK}
    s_load_dwordx2 s[{P+8}:{P+9}], s[0:1], {A_WS}
    s_load_dwordx2 s[{P+10}:{P+11}], s[0:1], {A_WQ}
    s_load_dwordx4 s[{P+12}:{P+15}], s[0:1], {A_WG}
    s_load_dwordx4 s[{P+16}:{P+19}], s[0:1], {A_WD}
    s_load_dwordx2 s[{SDBG}:{SDBG+1}], s[0:1], {A_DBG}
    s_load_dwordx2 s[{SWO}:{SWO+1}], s[0:1], {A_WO}
    s_load_dwordx2 s[{sOUTP}:{sOUTP+1}], s[0:1], {A_OUT}
    s_memrealtime s[{sCLK}:{sCLK+1}]
    v_lshrrev_b32 v{vT}, 6, v0
    v_and_b32 v{vLane}, 63, v0
    v_readfirstlane_b32 s{sW}, v{vT}
    v_and_b32 v{vI16}, 15, v0
    v_lshrrev_b32 v{vG}, 4, v{vLane}
    v_lshlrev_b32 v{vD}, 4, v{vLane}
    ; @@STAMP 0
    s_and_b32 s{sXCD}, s2, 7
    s_lshr_b32 s{sSLOT}, s2, 3
    s_and_b32 s{sT0}, s{sSLOT}, 3
    s_lshl_b32 s{sH}, s{sXCD}, 2
    s_add_u32 s{sH}, s{sH}, s{sT0}
    s_lshr_b32 s{sPI}, s{sSLOT}, 2
    s_lshr_b32 s{sP}, s{sW}, 2
    s_lshl_b32 s{mA}, s{sW}, 12
    s_add_u32 s{mWk}, s{mA}, 32768
    """)
    t0, t1, t2, t3 = 32, 33, 34, 35
    s += L(f"""
    v_lshrrev_b32 v{t0}, 3, v{vLane}
    v_and_b32 v{t1}, 7, v{vLane}
    """)
    for n in range(4):
        s += L(f"""
        v_add_u32 v{t2}, {4*n}, v{vG}
        v_and_b32 v{t2}, 7, v{t2}
        v_xor_b32 v{t2}, v{t2}, v{t1}
        v_lshlrev_b32 v{t2}, 4, v{t2}
        v_add_u32 v{t3}, {8*n}, v{t0}
        v_lshl_add_u32 v{vDC[n]}, v{t3}, 10, v{t2}
        v_subrev_u32 v{vDC[n]}, {n*1024}, v{vDC[n]}
        v_mul_u32_u24 v{t3}, 1280, v{t3}
        v_add_u32 v{vDX[n]}, v{t3}, v{t2}
        v_subrev_u32 v{vDX[n]}, {n*1024}, v{vDX[n]}
        """)
    for n in range(4):
        s += L(f"""
        v_lshrrev_b32 v{t2}, 1, v{vI16}
        v_xor_b32 v{t2}, v{t2}, v{vG}
        v_xor_b32 v{t2}, {((n>>1)&1)<<2}, v{t2}
        v_lshlrev_b32 v{t2}, 5, v{t2}
        v_and_b32 v{t3}, 1, v{vLane}
        v_lshl_add_u32 v{t2}, v{t3}, 4, v{t2}
        v_add_u32 v{t3}, {4*n}, v{vG}
        v_lshl_add_u32 v{vDW[n]}, v{t3}, 13, v{t2}
        v_subrev_u32 v{vDW[n]}, {n*1024}, v{vDW[n]}
        """)
    s += L(f"""
    s_lshl_b32 s{sT0}, s{sPI}, 8
    s_lshl_b32 s{sT1}, s{sW}, 5
    s_add_u32 s{sT0}, s{sT0}, s{sT1}
    s_lshl_b32 s{soC}, s{sT0}, 10
    s_and_b32 s{sT0}, s{sW}, 3
    s_lshl_b32 s{soW}, s{sT0}, 17
    s_lshl_b32 s{sT1}, s{sH}, 8
    s_add_u32 s{soW}, s{soW}, s{sT1}
    s_waitcnt lgkmcnt(0)
    """)
    s += srd(SC, P + 2, SZ_C)
    s += L(f"""
    s_cmp_lt_u32 s{sW}, 4
    s_cselect_b32 s{P+4}, s{P+4}, s{P+6}
    s_cselect_b32 s{P+5}, s{P+5}, s{P+7}
    """) + srd(SW1, P + 4, SZ_WUK)
    return s

def setup_late():
    s = srd(SX, P, SZ_X) + srd(SWS, P + 8, WS_BYTES) + srd(SGW, P + 18, SZ_GW) + srd(SWD, P + 16, SZ_WD)
    s += L(f"""
    s_and_b32 s{SDBG+1}, s{SDBG+1}, 0xffff
    s_mov_b32 s{SDBG+2}, 256
    s_mov_b32 s{SDBG+3}, 0x20000
    s_and_b32 s{SWO+1}, s{SWO+1}, 0xffff
    s_mov_b32 s{SWO+2}, {SZ_WO:#x}
    s_mov_b32 s{SWO+3}, 0x20000
    s_lshl_b32 s{sFLAG}, s{sH}, 3
    s_add_u32 s{sFLAG}, s{sFLAG}, s{sPI}
    s_lshl_b32 s{sFLAG}, s{sFLAG}, 8
    s_add_u32 s{sFLAG}, s{sFLAG}, {FLAG_OFF:#x}
    s_and_b32 s{sT0}, s{sSLOT}, 3
    s_lshl_b32 s{sFB}, s{sT0}, 3
    s_add_u32 s{sFB}, s{sFB}, s{sXCD}
    s_mul_i32 s{sT1}, s{sXCD}, 3
    s_sub_u32 s{sT2}, s{sPI}, s{sT1}
    s_and_b32 s{sT2}, s{sT2}, 7
    s_add_u32 s{sT1}, s{sT1}, s{sT2}
    s_lshr_b32 s{sT1}, s{sT1}, 3
    s_add_u32 s{sT1}, s{sT1}, 24
    s_mul_i32 s{sGI}, s{sXCD}, 5
    s_add_u32 s{sGI}, s{sGI}, s{sT2}
    s_sub_u32 s{sGI}, s{sGI}, 3
    s_cmp_lt_u32 s{sT2}, 3
    s_cselect_b32 s{sVALID}, 1, 0
    s_cmp_lt_u32 s{sT0}, 3
    s_cselect_b32 s{sVALID}, 1, s{sVALID}
    s_cselect_b32 s{sFB}, s{sFB}, s{sT1}
    s_cmp_eq_u32 s{sPI}, 0
    s_cselect_b64 vcc, -1, 0
    """)
    s += L(f"""
    s_or_b32 s{sT0}, s2, s{sW}
    s_cmp_lg_u32 s{sT0}, 0
    s_cbranch_scc1 NOTAG
    s_lshl_b32 s{sCLK}, s{sCLK}, 3
    s_bitset1_b32 s{sCLK}, 31
    v_mov_b32 v254, s{sCLK}
    s_mov_b64 exec, 1
    buffer_store_dword v254, off, s[{SDBG}:{SDBG+3}], 0 sc1 ; @opt
    s_mov_b64 exec, -1
    NOTAG:
    """)
    s += L(f"""
    s_cmp_lt_u32 s{sW}, 2
    s_cselect_b32 s{P+12}, s{P+12}, s{P+14}
    s_cselect_b32 s{P+13}, s{P+13}, s{P+15}
    s_cmp_lt_u32 s{sW}, 4
    s_cselect_b32 s{SW2}, s{P+12}, s{P+10}
    s_cselect_b32 s{SW2+1}, s{P+13}, s{P+11}
    s_and_b32 s{SW2+1}, s{SW2+1}, 0xffff
    s_mov_b32 s{sT0}, {SZ_WG:#x}
    s_cselect_b32 s{SW2+2}, s{sT0}, {SZ_WQ:#x}
    s_mov_b32 s{SW2+3}, 0x20000
    """)
    s = s[:-4] + L(f"""
    s_mov_b32 s{sT0}, {SZ_WG:#x}
    s_cselect_b32 s{SW2+2}, s{sT0}, {SZ_WQ:#x}
    s_and_b32 s{SW2+1}, s{SW2+1}, 0xffff
    s_mov_b32 s{SW2+3}, 0x20000
    """)
    s += L(f"""
    s_sub_u32 s{sT0}, 15, s{sPI}
    s_cmp_lt_u32 s{sW}, 4
    s_cselect_b32 s{sT1}, s{sT0}, s{sPI}
    s_lshl_b32 s{sT1}, s{sT1}, 7
    s_and_b32 s{sT2}, s{sW}, 3
    s_lshl_b32 s{sT2}, s{sT2}, 5
    s_add_u32 s{sT1}, s{sT1}, s{sT2}
    s_mul_i32 s{soX}, s{sT1}, 1280
    """)
    s += L(f"""
    s_and_b32 s{sT0}, s{sW}, 1
    s_mul_i32 s{sT0}, s{sT0}, {32*3456}
    s_lshl_b32 s{sT1}, s{sFB}, 7
    s_add_u32 s{sT0}, s{sT0}, s{sT1}
    s_and_b32 s{sT1}, s{sW}, 3
    s_lshl_b32 s{sT1}, s{sT1}, 17
    s_lshl_b32 s{sT2}, s{sH}, 8
    s_add_u32 s{sT1}, s{sT1}, s{sT2}
    s_cmp_lt_u32 s{sW}, 4
    s_cselect_b32 s{soG}, s{sT0}, s{sT1}
    """)
    return s

def prefill(k):
    r = PFV
    s = []
    if k == 0:
        s += L(f"""
        s_mul_i32 s{sST}, s2, {PART_WG}
        s_mul_i32 s{sT1}, s{sW}, 4608
        s_add_u32 s{sST}, s{sST}, s{sT1}
        s_add_u32 s{sST}, s{sST}, {PART_OFF:#x}
        """)
    s += [I(f"v_mov_b32 v{r+j}, -1") for j in range(4)]
    s += [I(f"buffer_store_dwordx4 v[{r}:{r+3}], v{vD}, s[{SWS}:{SWS+3}], s{sST} offen sc1"), I(f"s_add_u32 s{sST}, s{sST}, 1024")]
    return s

def pf_kv():
    a, b = vTMP, vT
    s = L(f"""
    s_lshl_b32 s{sT0}, s{sSLOT}, 16
    s_lshl_b32 s{sT1}, s{sW}, 13
    s_add_u32 s{sT0}, s{sT0}, s{sT1}
    v_lshlrev_b32 v{a}, 7, v{vLane}
    buffer_load_dword v{vPOLL}, v{a}, s[{SC}:{SC+3}], s{sT0} offen
    """)
    if "pf64" in OPT: s += L(f"buffer_load_dword v{vPOLL}, v{a}, s[{SC}:{SC+3}], s{sT0} offen offset:64")
    s += L(f"""
    s_lshl_b32 s{sT0}, s{sSLOT}, 17
    s_and_b32 s{sT1}, s{sW}, 3
    s_lshl_b32 s{sT1}, s{sT1}, 15
    s_add_u32 s{sT0}, s{sT0}, s{sT1}
    s_lshl_b32 s{sT1}, s{sXCD}, 10
    s_add_u32 s{sT0}, s{sT0}, s{sT1}
    v_lshlrev_b32 v{a}, 13, v{vG}
    v_lshl_add_u32 v{a}, v{vI16}, 6, v{a}
    buffer_load_dword v{vPOLL}, v{a}, s[{SW1}:{SW1+3}], s{sT0} offen
    """)
    return s

def pf_qg(kind, hf):
    a, b = vTMP, vT
    s = L(f"""
    s_lshl_b32 s{sT0}, s{sSLOT}, 6
    s_lshl_b32 s{sT1}, s{sW}, 3
    s_add_u32 s{sT0}, s{sT0}, s{sT1}
    s_mul_i32 s{sT0}, s{sT0}, 1280
    v_lshrrev_b32 v{a}, 3, v{vLane}
    v_mul_u32_u24 v{a}, 1280, v{a}
    v_and_b32 v{b}, 7, v{vLane}
    v_min_u32 v{b}, 4, v{b}
    v_lshl_add_u32 v{a}, v{b}, 7, v{a}
    buffer_load_dword v{vPOLL}, v{a}, s[{SX}:{SX+3}], s{sT0} offen offset:{640*hf}
    """)
    if "pf64" in OPT: s += L(f"buffer_load_dword v{vPOLL}, v{a}, s[{SX}:{SX+3}], s{sT0} offen offset:{640*hf+64}")
    if kind == 0:
        s += L(f"""
        s_mul_i32 s{sT0}, s{sPI}, 40
        s_and_b32 s{sT1}, s{sW}, 1
        s_mul_i32 s{sT1}, s{sT1}, 20
        s_add_u32 s{sT0}, s{sT0}, s{sT1}
        s_add_u32 s{sT0}, s{sT0}, {320*hf}
        s_mul_i32 s{sT0}, s{sT0}, 3456
        s_lshl_b32 s{sT1}, s{sFB}, 7
        s_add_u32 s{sT0}, s{sT0}, s{sT1}
        v_min_u32 v{b}, 39, v{vLane}
        v_lshrrev_b32 v{a}, 1, v{b}
        v_mul_u32_u24 v{a}, 3456, v{a}
        v_and_b32 v{b}, 1, v{b}
        v_lshl_add_u32 v{a}, v{b}, 6, v{a}
        buffer_load_dword v{vPOLL}, v{a}, s[{SW2}:{SW2+3}], s{sT0} offen
        """)
    elif kind == 1:
        s += L(f"""
        s_mul_i32 s{sT0}, s{sPI}, 40
        s_and_b32 s{sT1}, s{sW}, 3
        s_mul_i32 s{sT1}, s{sT1}, 10
        s_add_u32 s{sT0}, s{sT0}, s{sT1}
        s_add_u32 s{sT0}, s{sT0}, {320*hf}
        s_lshl_b32 s{sT0}, s{sT0}, 13
        s_lshl_b32 s{sT1}, s{sH}, 8
        s_add_u32 s{sT0}, s{sT0}, s{sT1}
        v_min_u32 v{b}, 39, v{vLane}
        v_lshrrev_b32 v{a}, 2, v{b}
        v_lshlrev_b32 v{a}, 13, v{a}
        v_and_b32 v{b}, 3, v{b}
        v_lshl_add_u32 v{a}, v{b}, 6, v{a}
        buffer_load_dword v{vPOLL}, v{a}, s[{SW2}:{SW2+3}], s{sT0} offen
        """)
    return s

def pf_once(kind, part):
    a, b = vTMP, vT
    if part == 0:
        return L(f"""
        s_lshl_b32 s{sT0}, s2, 3
        s_add_u32 s{sT0}, s{sT0}, s{sW}
        s_mul_i32 s{sT0}, s{sT0}, 1280
        v_min_u32 v{a}, 9, v{vLane}
        v_lshlrev_b32 v{a}, 7, v{a}
        buffer_load_dword v{vPOLL}, v{a}, s[{SX}:{SX+3}], s{sT0} offen
        """)
    n1, n0, o = (40, 34, 0) if part == 1 else (20, 17, part - 2)
    if kind == 1:
        return L(f"""
        s_lshl_b32 s{sT0}, s2, 2
        s_add_u32 s{sT0}, s{sT0}, s{sW}
        s_add_u32 s{sT0}, s{sT0}, {1024*o - 4}
        s_mul_i32 s{sT0}, s{sT0}, {n1*128}
        v_min_u32 v{a}, {n1-1}, v{vLane}
        v_lshlrev_b32 v{a}, 7, v{a}
        buffer_load_dword v{vPOLL}, v{a}, s[{SW2}:{SW2+3}], s{sT0} offen
        """)
    return L(f"""
    s_lshl_b32 s{sT0}, s2, 1
    s_and_b32 s{sT1}, s{sW}, 1
    s_add_u32 s{sT0}, s{sT0}, s{sT1}
    s_add_u32 s{sT0}, s{sT0}, {512*o}
    s_mul_i32 s{sT0}, s{sT0}, {n0*128}
    v_min_u32 v{a}, {n0-1}, v{vLane}
    v_lshlrev_b32 v{a}, 7, v{a}
    buffer_load_dword v{vPOLL}, v{a}, s[{SW2}:{SW2+3}], s{sT0} offen
    """)

def pf_kv2(lo, hi):
    a, b = vTMP, vT
    n = hi - lo
    per = n * 4
    return L(f"""
    s_lshl_b32 s{sT0}, s2, 2
    s_and_b32 s{sT1}, s{sW}, 3
    s_add_u32 s{sT0}, s{sT0}, s{sT1}
    s_mul_i32 s{sT0}, s{sT0}, {per*128}
    s_add_u32 s{sT0}, s{sT0}, {lo*64*8192}
    v_min_u32 v{a}, {per-1}, v{vLane}
    v_lshlrev_b32 v{a}, 7, v{a}
    buffer_load_dword v{vPOLL}, v{a}, s[{SW1}:{SW1+3}], s{sT0} offen
    s_lshl_b32 s{sT0}, s2, 3
    s_add_u32 s{sT0}, s{sT0}, s{sW}
    s_lshl_b32 s{sT0}, s{sT0}, 10
    v_min_u32 v{a}, {n-1}, v{vLane}
    v_lshlrev_b32 v{a}, 7, v{a}
    buffer_load_dword v{vPOLL}, v{a}, s[{SC}:{SC+3}], s{sT0} offen offset:{lo*128}
    """)

def pf_w3(k):
    a = vTMP
    R, idx = (SWO, k) if k < 4 else (SWD, k - 4)
    return L(f"""
    s_lshl_b32 s{sT0}, s{sGI}, 2
    s_add_u32 s{sT0}, s{sT0}, s{sW}
    s_add_u32 s{sT0}, s{sT0}, {160*idx}
    s_lshl_b32 s{sT0}, s{sT0}, 13
    v_lshlrev_b32 v{a}, 3, v{vD}
    buffer_load_dword v124, v{a}, s[{R}:{R+3}], s{sT0} offen
    """)

def pf_c():
    a = vTMP
    return L(f"""
    s_lshl_b32 s{sT0}, s2, 3
    s_add_u32 s{sT0}, s{sT0}, s{sW}
    s_lshl_b32 s{sT0}, s{sT0}, 10
    v_and_b32 v{a}, 7, v{vLane}
    v_lshlrev_b32 v{a}, 7, v{a}
    buffer_load_dword v{vPOLL}, v{a}, s[{SC}:{SC+3}], s{sT0} offen
    """)

def dma4(m_expr, v, R, so, tag, inc, extra=""):
    g = [[I(m_expr), I("s_nop 0"), dma(v[0], R, so, 0, tag, extra)]] + [[dma(v[n], R, so, n * 1024, tag, extra)] for n in range(1, 4)]
    if inc: g[-1].append(I(f"s_add_u32 s{so}, s{so}, {inc}"))
    return g

WNT = " nt" if "wnt" in OPT else ""
def kv_dma(stage):
    buf = (stage % 2) * 65536
    tag = f"kv{stage}"
    return dma4(f"s_add_u32 m0, s{mA}, {buf}", vDC, SC, soC, tag, 128) + dma4(f"s_add_u32 m0, s{mWk}, {buf}", vDW, SW1, soW, tag, 64 * 8192, WNT)

def qg_dma(kind, stage):
    buf = (stage % 2) * 65536
    tag = f"qg{stage}"
    g = dma4(f"s_add_u32 m0, s{mA}, {buf}", vDX, SX, soX, tag, 128)
    if kind != 2:
        g += dma4(f"s_add_u32 m0, s{mWk}, {buf}", vDW, SW2, soG, tag, 64 * (3456 if kind == 0 else 8192), WNT)
    return g

def kv_addr():
    t0, t1, t2 = 32, 33, 34
    s = L(f"""
    s_lshr_b32 s{sT0}, s{sW}, 1
    s_and_b32 s{sT0}, s{sT0}, 1
    s_lshl_b32 s{sT0}, s{sT0}, 14
    v_lshrrev_b32 v{t0}, 1, v{vI16}
    v_xor_b32 v{t0}, v{t0}, v{vG}
    v_lshlrev_b32 v{t0}, 4, v{t0}
    v_lshl_add_u32 v{t0}, v{vI16}, 7, v{t0}
    v_add_u32 v{vRA[0][0]}, s{sT0}, v{t0}
    v_xor_b32 v{vRA[0][1]}, 64, v{vRA[0][0]}
    v_add_u32 v{vRA[1][0]}, 0x10000, v{vRA[0][0]}
    v_add_u32 v{vRA[1][1]}, 0x10000, v{vRA[0][1]}
    s_lshl_b32 s{sT0}, s{sP}, 14
    s_add_u32 s{sT0}, s{sT0}, 32768
    s_and_b32 s{sT1}, s{sW}, 1
    s_lshl_b32 s{sT1}, s{sT1}, 2
    v_lshrrev_b32 v{t0}, 2, v{vI16}
    v_and_b32 v{t1}, 1, v{vG}
    v_lshl_add_u32 v{t1}, v{t1}, 2, v{t0}
    v_xor_b32 v{t1}, s{sT1}, v{t1}
    v_lshl_add_u32 v{t0}, v{vG}, 3, v{t0}
    v_lshlrev_b32 v{t0}, 8, v{t0}
    v_and_b32 v{t2}, 3, v{vI16}
    v_lshl_add_u32 v{t0}, v{t2}, 3, v{t0}
    v_add_u32 v{t0}, s{sT0}, v{t0}
    """)
    for j in range(4):
        s += L(f"""
        v_xor_b32 v{t2}, {j}, v{t1}
        v_lshl_add_u32 v{vRW[0][j]}, v{t2}, 5, v{t0}
        v_add_u32 v{vRW[1][j]}, 0x10000, v{vRW[0][j]}
        """)
    return s

def gu_dma_addr():
    a, b = vTMP, vT
    s = []
    for n in range(4):
        s += L(f"""
        v_bfe_u32 v{a}, v{vLane}, 1, 2
        v_and_b32 v{b}, 1, v{vG}
        v_xor_b32 v{a}, v{a}, v{b}
        v_xor_b32 v{a}, {(n&1)<<1}, v{a}
        v_lshlrev_b32 v{a}, 5, v{a}
        v_and_b32 v{b}, 1, v{vLane}
        v_lshl_add_u32 v{a}, v{b}, 4, v{a}
        v_lshrrev_b32 v{b}, 3, v{vLane}
        v_add_u32 v{b}, {8*n}, v{b}
        v_mul_u32_u24 v{b}, 3456, v{b}
        v_add_u32 v{vDW[n]}, v{b}, v{a}
        v_subrev_u32 v{vDW[n]}, {n*1024}, v{vDW[n]}
        """)
    return s

def gu_read_addr(buf):
    a, b = vTMP, vT
    r0, r1 = vRW[buf][0], vRW[buf][1]
    return L(f"""
    s_and_b32 s{sT1}, s{sW}, 1
    s_lshl_b32 s{sT1}, s{sT1}, 1
    v_lshrrev_b32 v{a}, 3, v{vI16}
    v_and_b32 v{b}, 1, v{vG}
    v_lshl_add_u32 v{a}, v{b}, 1, v{a}
    v_xor_b32 v{a}, s{sT1}, v{a}
    v_lshrrev_b32 v{b}, 2, v{vI16}
    v_lshl_add_u32 v{b}, v{vG}, 3, v{b}
    v_lshlrev_b32 v{b}, 7, v{b}
    v_and_b32 v{r1}, 3, v{vI16}
    v_lshl_add_u32 v{b}, v{r1}, 3, v{b}
    v_add_u32 v{b}, {32768 + buf*65536:#x}, v{b}
    v_lshl_add_u32 v{r0}, v{a}, 5, v{b}
    v_xor_b32 v{a}, 1, v{a}
    v_lshl_add_u32 v{r1}, v{a}, 5, v{b}
    """)

def kv_reads(stage, kk, st):
    b = stage % 2
    base = SET[st]
    c = lambda tt: rd128(base + 4 * tt, vRA[b][kk], tt * 2048)
    w = lambda j: [rdtr(base + 32 + 4 * j, vRW[b][j], kk * 8192), rdtr(base + 32 + 4 * j + 2, vRW[b][j], kk * 8192 + 1024)]
    return w(0) + [c(0)] + w(1) + w(2) + w(3) + [c(t) for t in range(1, 8)]

def kv_mfmas(kind, st, first, rev=False):
    base = SET[st]
    out = []
    for tt in (range(7, -1, -1) if rev else range(8)):
        for j in range(4):
            d = ACC + (tt * 4 + j) * 4
            cf, wf = base + 4 * tt, base + 32 + 4 * j
            out.append(mf(d, wf, cf, 0 if first else None) if kind != 1 else mf(d, cf, wf, 0 if first else None))
    return out

WB = [32, 48]; XR = 64
acc2 = lambda t: (80 + 4 * t) if t < 12 else (128 + 4 * (t - 12))
PK = 192
def qg_wreads(kind, stage, kk):
    b = stage % 2; base = WB[kk]
    out = []
    for j in range(4):
        if kind == 0:
            o = (j >> 1) * 8192 + kk * 4096
            out += [rdtr(base + 4 * j, vRW[b][j & 1], o), rdtr(base + 4 * j + 2, vRW[b][j & 1], o + 512)]
        else:
            out += [rdtr(base + 4 * j, vRW[b][j], kk * 8192), rdtr(base + 4 * j + 2, vRW[b][j], kk * 8192 + 1024)]
    return out
def qg_xread(stage, n):
    kk, tt = n >> 3, n & 7
    return rd128(XR + 4 * (n % 4), vRA[stage % 2][kk], tt * 2048)
def qg_mfmas(stage):
    out = []
    for n in range(16):
        kk, tt = n >> 3, n & 7
        for j in range(4):
            out.append(mf(acc2(tt * 4 + j), WB[kk] + 4 * j, XR + 4 * (n % 4), 0 if (stage == 0 and kk == 0) else None))
    return out

def kv_store_base(kind):
    if kind != 1:
        return L(f"""
        s_lshl_b32 s{sST}, s{sH}, 19
        s_add_u32 s{sST}, s{sST}, {KF_OFF:#x}
        s_lshl_b32 s{sT0}, s{sPI}, 16
        s_add_u32 s{sST}, s{sST}, s{sT0}
        s_lshr_b32 s{sT0}, s{sW}, 1
        s_lshl_b32 s{sT0}, s{sT0}, 15
        s_add_u32 s{sST}, s{sST}, s{sT0}
        s_and_b32 s{sT0}, s{sW}, 1
        s_lshl_b32 s{sT0}, s{sT0}, 11
        s_add_u32 s{sST}, s{sST}, s{sT0}
        """)
    return L(f"""
    s_lshl_b32 s{sST}, s{sH}, 19
    s_add_u32 s{sST}, s{sST}, {KF_OFF + VF_OFF:#x}
    s_lshl_b32 s{sT0}, s{sPI}, 16
    s_add_u32 s{sST}, s{sST}, s{sT0}
    s_lshr_b32 s{sT0}, s{sW}, 1
    s_and_b32 s{sT0}, s{sT0}, 1
    s_lshl_b32 s{sT0}, s{sT0}, 15
    s_add_u32 s{sST}, s{sST}, s{sT0}
    s_and_b32 s{sT0}, s{sW}, 1
    s_lshl_b32 s{sT0}, s{sT0}, 12
    s_add_u32 s{sST}, s{sST}, s{sT0}
    """)

def kv_packs(kind):
    A = lambda tt, j: ACC + (tt * 4 + j) * 4
    out = []
    for k in range(15, -1, -1):
        if kind != 1: x, y = A(k >> 1, 2 * (k & 1)), A(k >> 1, 2 * (k & 1) + 1)
        else: x, y = A(2 * (k >> 2), k & 3), A(2 * (k >> 2) + 1, k & 3)
        out += pack2(PK + 4 * k, x, y)[::-1]
    return out

def kv_store(kind, k):
    r = PK + 4 * k
    if kind != 1:
        s = [I(f"buffer_store_dwordx4 v[{r}:{r+3}], v{vD}, s[{SWS}:{SWS+3}], s{sST} offen offset:{(k&1)*1024}{KVSC}")]
        if k & 1: s.append(I(f"s_add_u32 s{sST}, s{sST}, 4096"))
    else:
        s = [I(f"buffer_store_dwordx4 v[{r}:{r+3}], v{vD}, s[{SWS}:{SWS+3}], s{sST} offen offset:{(k&3)*1024}{KVSC}")]
        if k & 3 == 3: s.append(I(f"s_add_u32 s{sST}, s{sST}, 8192"))
    return s

def signal(val, lab, vt=vPOLL):
    return L(f"""
    s_cmp_lg_u32 s{sW}, 0
    s_cbranch_scc1 {lab}
    v_mov_b32 v{vt}, {val}
    v_add_u32 v{vt}, s{sNL}, v{vt}
    s_mov_b64 exec, 1
    buffer_store_dword v{vt}, off, s[{SWS}:{SWS+3}], s{sFLAG} sc1 ; @opt
    s_mov_b64 exec, -1
    {lab}:
    """)

STUBS = []
SETS = {"A": (0x1, 0), "B": (0xffff, 0), "C": (0xffff0000, 0), "D": (0, 0x0f), "E": (0, 0xf0)}
def set_mask(which, d):
    lo, hi = SETS[which]
    return L(f"s_mov_b32 {d}_lo, {lo:#x}\ns_mov_b32 {d}_hi, {hi:#x}")
def poll_load(which, vp, tag=None):
    return set_mask(which, "exec") + L(f"""
    buffer_load_dword v{vp}, v{vMAP}, s[{SWS}:{SWS+3}], 0 offen sc1{" ; @" + tag if tag else ""}
    s_mov_b64 exec, -1
    """)
def flag_chk(which, vp, n):
    lo, hi = SETS[which]
    return L(f"""
    s_add_u32 s{sT2}, s{sNL}, {n}
    v_subrev_u32 v{vp}, s{sT2}, v{vp}
    v_cmp_le_u32 vcc, {8-n}, v{vp}
    s_mov_b32 s{sT2}, {lo:#x}
    s_mov_b32 s{sT3}, {hi:#x}
    s_and_b64 vcc, s[{sT2}:{sT3}], vcc
    """)
def spin(which, vp, n, lab):
    return L(f"""
    s_mov_b32 s{sPC}, 0
    {lab}_L:
    """) + poll_load(which, vp) + L(f"""
    s_add_u32 s{sPC}, s{sPC}, 1
    s_waitcnt vmcnt(0)
    """) + flag_chk(which, vp, n) + L(f"""
    s_cbranch_vccz {lab}_C
    s_cmp_ge_u32 s{sPC}, 0x40000
    s_cbranch_scc1 {lab}_C
    s_sleep 3
    s_branch {lab}_L
    """)
def poll_check(which, vp, tag, n, lab):
    s = [waitvm(tag) if tag else I("s_waitcnt vmcnt(0)")] + flag_chk(which, vp, n) + L(f"s_cbranch_vccnz {lab}_S\n{lab}_C:")
    STUBS.append(L(f"{lab}_S:") + spin(which, vp, n, lab))
    return s

def tag_load():
    return L(f"buffer_load_dword v{vT}, off, s[{SDBG}:{SDBG+3}], 0 sc1 ; @tag")
def tag_check(lab):
    rd = L(f"""
    v_readfirstlane_b32 s{sNL}, v{vT}
    s_cmp_eq_u32 s{sNL}, 0
    """)
    STUBS.append(L(f"""
    {lab}_S:
    s_mov_b32 s{sPC}, 0
    {lab}_L:
    s_sleep 8
    buffer_load_dword v{vT}, off, s[{SDBG}:{SDBG+3}], 0 sc1
    s_add_u32 s{sPC}, s{sPC}, 1
    s_cmp_ge_u32 s{sPC}, 0x40000
    s_waitcnt vmcnt(0)
    s_cbranch_scc1 {lab}_C
    """) + rd + L(f"s_cbranch_scc1 {lab}_L\ns_branch {lab}_C"))
    return [waitvm("tag")] + rd + L(f"s_cbranch_scc1 {lab}_S\n{lab}_C:")

def flag_map():
    a, b, c, d = 24, 25, 26, 27
    m = 80
    C, MT, PM, HH = m, m + 1, m + 2, m + 3
    g = [[i] for i in L(f"""
    s_and_b32 s{C}, s{sXCD}, 3
    s_lshr_b32 s{MT}, s{sXCD}, 2
    s_lshl_b32 s{MT}, s{MT}, 3
    s_add_u32 s{MT}, s{MT}, s{sPI}
    s_sub_u32 s{PM}, 15, s{MT}
    s_min_u32 s{PM}, s{PM}, s{MT}
    s_and_b32 s{HH}, s{sSLOT}, 3
    s_lshl_b32 s{m+4}, s{sPI}, 1
    s_sub_u32 s{m+5}, 30, s{m+4}
    s_lshl_b32 s{m+6}, s{MT}, 1
    s_mov_b32 s{m+8}, 0xcccc
    s_mov_b32 s{m+9}, 0
    s_mov_b32 s{m+10}, 0xffff0000
    s_mov_b32 s{m+11}, -1
    v_mov_b32 v{a}, s{m+5}
    v_mov_b32 v{b}, s{m+4}
    v_cndmask_b32 v{a}, v{a}, v{b}, s[{m+8}:{m+9}]
    v_mov_b32 v{b}, s{m+6}
    v_cndmask_b32 v{a}, v{a}, v{b}, s[{m+10}:{m+11}]
    v_and_b32 v{b}, 1, v{vLane}
    v_add_u32 v{a}, v{a}, v{b}
    v_mul_u32_u24 v{b}, 52, v{a}
    v_lshrrev_b32 v{b}, 8, v{b}
    v_lshlrev_b32 v{c}, 1, v{b}
    v_sub_u32 v{a}, v{a}, v{c}
    v_add_u32 v{a}, 3, v{a}
    v_and_b32 v{a}, 7, v{a}
    v_lshl_add_u32 v{a}, v{b}, 5, v{a}
    v_add_u32 v{a}, 24, v{a}
    s_mul_i32 s{m+4}, s{C}, 7
    v_and_b32 v{d}, 7, v{vLane}
    v_min_u32 v{b}, 6, v{d}
    v_add_u32 v{b}, s{m+4}, v{b}
    v_min_u32 v{b}, 26, v{b}
    v_and_b32 v{c}, 7, v{b}
    v_lshlrev_b32 v{c}, 2, v{c}
    v_lshrrev_b32 v{vT}, 3, v{b}
    v_add_u32 v{c}, v{c}, v{vT}
    v_cmp_le_u32 s[{m+8}:{m+9}], 24, v{b}
    v_subrev_u32 v{b}, 24, v{b}
    v_lshlrev_b32 v{b}, 3, v{b}
    v_add_u32 v{b}, s{PM}, v{b}
    v_mul_u32_u24 v{b}, 86, v{b}
    v_lshrrev_b32 v{b}, 8, v{b}
    v_lshlrev_b32 v{b}, 2, v{b}
    v_add_u32 v{b}, 3, v{b}
    v_cndmask_b32 v{c}, v{c}, v{b}, s[{m+8}:{m+9}]
    v_lshlrev_b32 v{c}, 3, v{c}
    v_add_u32 v{c}, s{PM}, v{c}
    s_mov_b32 s{m+8}, 0x00ff0000
    s_mov_b32 s{m+9}, 0
    v_cndmask_b32 v{a}, v{a}, v{c}, s[{m+8}:{m+9}]
    s_and_b32 s{m+4}, s{sXCD}, 4
    s_lshl_b32 s{m+4}, s{m+4}, 2
    s_add_u32 s{m+4}, s{m+4}, s{HH}
    s_lshl_b32 s{m+4}, s{m+4}, 3
    s_add_u32 s{m+4}, s{m+4}, s{sPI}
    v_and_b32 v{b}, 3, v{vLane}
    v_lshlrev_b32 v{b}, 5, v{b}
    v_add_u32 v{b}, s{m+4}, v{b}
    s_mov_b32 s{m+10}, 0xf0000000
    s_mov_b32 s{m+11}, 0
    v_cndmask_b32 v{a}, v{a}, v{b}, s[{m+10}:{m+11}]
    s_lshl_b32 s{m+4}, s{sH}, 3
    v_add_u32 v{b}, s{m+4}, v{d}
    s_mov_b32 s{m+8}, 0xff
    v_cndmask_b32 v{a}, v{a}, v{b}, s[{m+8}:{m+9}]
    s_lshl_b32 s{m+4}, s{C}, 6
    s_add_u32 s{m+4}, s{m+4}, s{PM}
    v_lshlrev_b32 v{b}, 3, v{d}
    v_add_u32 v{b}, s{m+4}, v{b}
    s_mov_b32 s{m+10}, 0
    s_mov_b32 s{m+11}, -1
    v_cndmask_b32 v{a}, v{a}, v{b}, s[{m+10}:{m+11}]
    v_lshlrev_b32 v{a}, 8, v{a}
    v_add_u32 v{vMAP}, {FLAG_OFF:#x}, v{a}
    """)]
    return g

SCHEDS = {
    "s0": {"a": ["k28"], 4: ["x"], 5: ["w"]},
    "s1": {"s": ["k25"], 0: ["k58"], 1: ["x"], 2: ["w0"], 3: ["w1"]},
    "s2": {"a": ["k25"], 0: ["k58"], 1: ["x"], 2: ["w0"], 3: ["w1"]},
    "s3": {"a": ["k28"], 1: ["x"], 2: ["w0"], 3: ["w1"]},
    "s4": {"s": ["k28"], "a": ["x"], 0: ["w0"], 1: ["w1"]},
    "n0": {},
    "n1": {"s": ["kw", "kc"], 0: ["x"], 2: ["qw"]},
    "n2": {"a": ["kw", "kc"], 1: ["x"], 3: ["qw"]},
    "n3": {"s": ["kc"], "a": ["kw"], 0: ["x"], 2: ["qw"]},
    "n4": {"s": ["kc"], 0: ["x"]},
    "s5": {"s": ["k24"], "a": ["k48"], 0: ["x"], 1: ["w0"], 2: ["w1"]},
}
SCHED = SCHEDS[[o for o in OPT if o in SCHEDS][0] if any(o in SCHEDS for o in OPT) else "s2"]
def pf_new(kind, it):
    a, b = vTMP, 30 if False else vTMP
    if it == "kw":
        return L(f"""
        s_lshl_b32 s{sT0}, s{sSLOT}, 2
        s_and_b32 s{sT1}, s{sW}, 3
        s_add_u32 s{sT0}, s{sT0}, s{sT1}
        s_mul_i32 s{sT0}, s{sT0}, {3*8192}
        s_lshl_b32 s{sT1}, s{sXCD}, 10
        s_add_u32 s{sT0}, s{sT0}, s{sT1}
        s_add_u32 s{sT0}, s{sT0}, {128*8192}
        v_min_u32 v{a}, 23, v{vLane}
        v_mul_u32_u24 v{a}, 0x401, v{a}
        v_and_b32 v{a}, 0x6007, v{a}
        v_mul_u32_u24 v{a}, 0x81, v{a}
        v_and_b32 v{a}, 0x6380, v{a}
        buffer_load_dword v{vPOLL}, v{a}, s[{SW1}:{SW1+3}], s{sT0} offen nt
        """)
    if it == "kc":
        return L(f"""
        s_lshl_b32 s{sT0}, s2, 3
        s_add_u32 s{sT0}, s{sT0}, s{sW}
        s_lshl_b32 s{sT0}, s{sT0}, 10
        v_min_u32 v{a}, 5, v{vLane}
        v_lshlrev_b32 v{a}, 7, v{a}
        buffer_load_dword v{vPOLL}, v{a}, s[{SC}:{SC+3}], s{sT0} offen offset:256
        """)
    assert it == "qw"
    if kind == 1:
        return L(f"""
        s_lshl_b32 s{sT0}, s{sSLOT}, 2
        s_and_b32 s{sT1}, s{sW}, 3
        s_add_u32 s{sT0}, s{sT0}, s{sT1}
        s_mul_i32 s{sT0}, s{sT0}, {5*8192}
        s_lshl_b32 s{sT1}, s{sXCD}, 10
        s_add_u32 s{sT0}, s{sT0}, s{sT1}
        v_min_u32 v{a}, 39, v{vLane}
        v_mul_u32_u24 v{a}, 0x401, v{a}
        v_and_b32 v{a}, 0xe007, v{a}
        v_mul_u32_u24 v{a}, 0x81, v{a}
        v_and_b32 v{a}, 0xe380, v{a}
        buffer_load_dword v{vPOLL}, v{a}, s[{SW2}:{SW2+3}], s{sT0} offen nt
        """)
    if kind == 2: return []
    return L(f"""
    s_lshl_b32 s{sT0}, s{sPI}, 1
    s_and_b32 s{sT1}, s{sW}, 1
    s_add_u32 s{sT0}, s{sT0}, s{sT1}
    s_mul_i32 s{sT0}, s{sT0}, {40*3456}
    s_lshl_b32 s{sT1}, s{sFB}, 7
    s_add_u32 s{sT0}, s{sT0}, s{sT1}
    v_min_u32 v{a}, 39, v{vLane}
    v_mul_u32_u24 v{a}, 3456, v{a}
    buffer_load_dword v{vPOLL}, v{a}, s[{SW2}:{SW2+3}], s{sT0} offen nt
    """)

def pf_item(kind, it):
    if it in ("kw", "kc", "qw"): return pf_new(kind, it)
    s = pf_kv2(int(it[1]), int(it[2])) if it[0] == "k" else pf_once(kind, {"x": 0, "w": 1, "w0": 2, "w1": 3}[it])
    if "pf64" not in OPT: return s
    out = []
    for i in s:
        out.append(i)
        if i.kind == "vld":
            m = re.search(r"offset:(\d+)", i.t)
            out.append(I(i.t.replace(m.group(0), f"offset:{int(m.group(1))+64}") if m else i.t + " offset:64"))
    return out

def pf_code():
    return L(f"""
    s_cmp_lg_u32 s{sW}, 7
    s_cbranch_scc1 NOPFC
    s_getpc_b64 s[{sT0}:{sT1}]
    PFC_REF:
    s_mul_i32 s{sT2}, s{sSLOT}, {28*128}
    v_min_u32 v250, 27, v{vLane}
    v_lshlrev_b32 v250, 7, v250
    v_add_u32 v250, s{sT2}, v250
    v_min_u32 v250, K_END-PFC_REF, v250
    v_mov_b32 v251, s{sT1}
    v_add_co_u32 v250, s[{sT2}:{sT3}], s{sT0}, v250
    s_nop 1
    v_addc_co_u32 v251, s[{sT2}:{sT3}], 0, v251, s[{sT2}:{sT3}]
    global_load_dword v{vPOLL}, v[250:251], off ; @opt
    NOPFC:
    """)

def kv_part(kind):
    s = []
    for st in range(8):
        f = spread(kv_reads(st, 1, 1), 0, 24)
        if 1 <= st <= 5 and "nofill" not in OPT: f = [(-1, prefill(st - 1))] + f
        if st == 0:
            for it in SCHED.get("a", []): f += spread(pf_item(kind, it), 0, 14)
        if st == 0 and "pfkv" in OPT: f += spread(pf_kv(), 2, 30)
        if st == 2: f.append((4, tag_load()))
        if st == 4 and "pfq" in OPT: f += spread(pf_qg(kind, 0), 2, 30)
        if st == 6 and kind == 0: f += spread(gu_dma_addr(), 4, 30)
        if st == 7: f += spread(kv_store_base(kind), 24, 31)
        s += weave(kv_mfmas(kind, 0, st == 0), f)
        s += [waitvm(f"kv{st+1}" if st < 7 else "qg0", lgkm=True), I("s_barrier")] + [stamp(2 + st if st not in (4, 5, 6) else 35 + st)]
        if st == 3: s += tag_check(f"TAG{kind}")
        if st < 7:
            f = spread(kv_reads(st + 1, 0, 0), 0, 24) + spread(kv_dma(st + 2) if st < 6 else qg_dma(kind, 0), 1, 25)
            for it in SCHED.get(st, []): f += spread(pf_item(kind, it), 25, 31)
        else:
            f = spread(qg_dma(kind, 1), 1, 25)
            if kind == 0: f += [(-1, gu_read_addr(0))] + spread(gu_read_addr(1), 20, 31)
            if kind != 2: f += spread(qg_wreads(kind, 0, 0)[:2] + [qg_xread(0, 0)] + qg_wreads(kind, 0, 0)[2:] + [qg_xread(0, n) for n in (1, 2, 3)], 2, 24)
        s += weave(kv_mfmas(kind, 1, False, st == 7), f)
    return s

C1 = 2.0 * 0.7978845608028654 * 1.4426950408889634
QSC = 1.4426950408889634 * 128 ** -0.5
BARP = 52

def g_pass(ps):
    X, W, A, T = 32, 72, 112, 116
    ld = L(f"""
    s_lshl_b32 s{sT0}, s{sGI}, 6
    s_lshl_b32 s{sT1}, s{sW}, 4
    s_add_u32 s{sT0}, s{sT0}, s{sT1}
    s_add_u32 s{sT0}, s{sT0}, {8*ps}
    v_lshrrev_b32 v{T}, 3, v{vLane}
    v_add_u32 v{T}, s{sT0}, v{T}
    v_and_b32 v{T+1}, 7, v{vLane}
    v_lshlrev_b32 v{T+1}, 4, v{T+1}
    v_mul_u32_u24 v{T+2}, 1280, v{T}
    v_add_u32 v{T+2}, v{T+2}, v{T+1}
    """)
    for j in range(10):
        ld.append(I(f"buffer_load_dwordx4 v[{X+4*j}:{X+4*j+3}], v{T+2}, s[{SX}:{SX+3}], 0 offen offset:{j*128} ; @g{ps}"))
        if ps == 0: ld.append(I(f"buffer_load_dwordx4 v[{W+4*j}:{W+4*j+3}], v{T+1}, s[{SGW}:{SGW+3}], 0 offen offset:{j*128} ; @g{ps}"))
    s = L(f"""
    v_mov_b32 v{A}, 0
    v_mov_b32 v{A+1}, 0
    s_mov_b32 s{sT1}, 0xffff0000
    """) + [waitvm(f"g{ps}")]
    t = T + 4
    for r in range(40):
        s += L(f"""
        v_lshlrev_b32 v{t}, 16, v{X+r}
        v_and_b32 v{t+1}, s{sT1}, v{X+r}
        v_lshlrev_b32 v{t+2}, 16, v{W+r}
        v_and_b32 v{t+3}, s{sT1}, v{W+r}
        v_mul_f32 v{t}, v{t}, v{t+2}
        v_mul_f32 v{t+1}, v{t+1}, v{t+3}
        v_cvt_pk_bf16_f32 v{t}, v{t}, v{t+1}
        v_and_b32 v{t+1}, s{sT1}, v{t}
        v_lshlrev_b32 v{t}, 16, v{t}
        v_add_f32 v{A}, v{A}, v{t}
        v_add_f32 v{A+1}, v{A+1}, v{t+1}
        """)
    s += L(f"""
    v_add_f32 v{A}, v{A}, v{A+1}
    s_nop 1
    v_add_f32_dpp v{A}, v{A}, v{A} quad_perm:[1,0,3,2] row_mask:0xf bank_mask:0xf
    s_nop 1
    v_add_f32_dpp v{A}, v{A}, v{A} quad_perm:[2,3,0,1] row_mask:0xf bank_mask:0xf
    s_nop 1
    v_add_f32_dpp v{A}, v{A}, v{A} row_half_mirror row_mask:0xf bank_mask:0xf
    v_cvt_pk_bf16_f32 v{A}, v{A}, v{A}
    v_lshlrev_b32 v{A}, 16, v{A}
    v_mul_f32 v{A}, {f2h(-1.4426950408889634)}, v{A}
    v_exp_f32 v{A}, v{A}
    s_nop 0
    v_add_f32 v{A}, 1.0, v{A}
    v_rcp_f32 v{A}, v{A}
    s_nop 0
    v_cvt_pk_bf16_f32 v{A}, v{A}, v{A}
    v_lshlrev_b32 v{A}, 16, v{A}
    v_sub_f32 v{A+1}, 1.0, v{A}
    v_cvt_pk_bf16_f32 v{A+1}, v{A+1}, v{A+1}
    v_lshlrev_b32 v{A+1}, 16, v{A+1}
    v_lshlrev_b32 v{T}, 2, v{T}
    s_mov_b32 s{sT1}, {G_OFF:#x}
    s_cmp_ge_u32 s{sGI}, 32
    s_cselect_b32 s{sT1}, 0x70000000, s{sT1}
    buffer_store_dword v{A}, v{T}, s[{SWS}:{SWS+3}], s{sT1} offen sc1
    s_add_u32 s{sT1}, s{sT1}, 8192
    buffer_store_dword v{A+1}, v{T}, s[{SWS}:{SWS+3}], s{sT1} offen sc1
    """)
    return ld, s

EARLY = {0: [4, 5, 6], 1: [7, 8, 9], 2: [10, 11, 12], 3: [13, 14, 15]}
LATE = {1: [4, 5], 2: [6, 7], 3: [8, 9], 4: [10, 11], 5: [12, 13], 6: [14], 7: [15]}
def qg_part(kind, att_first, att_second, extra):
    s = []
    pend = []
    for st in range(10):
        f = []
        if pend: f += spread(pend, 0, 20)
        if kind != 2:
            f += [(4 * (n - 4) + 3, qg_xread(st, n)) for n in range(4, 16)]
            f += [(5 + 3 * k, r) for k, r in enumerate(qg_wreads(kind, st, 1))]
        if st == 0:
            pk = kv_packs(kind)
            if kind == 2: f += [(-1, [I("s_nop 7")])]
            f += spread(pk, 0, 11) + [(12 + 4 * k, kv_store(kind, k)) for k in range(4)]
        for i, k in enumerate(EARLY.get(st, [])):
            f.append((30 + 8 * i if st == 0 else 22 + 10 * i, guarded(1, kv_store(kind, k))))
        for i, k in enumerate(LATE.get(st, [])):
            f.append((21 + 16 * i, guarded(0, kv_store(kind, k))))
        if st == 1 and ("pfq" in OPT or "pfl" in OPT): f += spread(pf_qg(kind, 1), 24, 46)
        if kind == 2:
            if st == 0: f.append((47, g_pass(0)[0]))
            if st == 1: f.append((47, g_pass(0)[1] + g_pass(1)[0]))
            if st == 2: f.append((47, g_pass(1)[1]))
            if "pf3idle" in OPT:
                for k in {3: [4, 5], 4: [0], 5: [1], 6: [2], 7: [3]}.get(st, []): f.append((21, pf_w3(k)))
        if st == 8: f += spread(flag_map(), 6, 40) + [(41, poll_load("A", vPOLL, "p1"))]
        f += extra.get(st, [])
        d = []
        if st < 9:
            bar = [waitvm(f"qg{st+1}", lgkm=True), I("s_barrier"), stamp(10 + st)]
            if st == 4: bar += guarded(1, signal(1, f"SIG1_{kind}"))
            if st == 8: bar += poll_check("A", vPOLL, "p1", 1, f"PL1_{kind}")
            f.append((BARP, bar))
            if kind != 2:
                w = qg_wreads(kind, st + 1, 0)
                f.append((BARP, w[:2] + [qg_xread(st + 1, 0)]))
                f += [(BARP + 1 + k, w[2 + k]) for k in range(6)]
                f += [(55, qg_xread(st + 1, 1)), (59, qg_xread(st + 1, 2)), (63, qg_xread(st + 1, 3))]
            d = qg_dma(kind, st + 2) if st < 8 else att_first
            f += spread(d[:3], BARP + 2, 63)
        else:
            bar = [waitvm("k0", lgkm=True), I("s_barrier"), stamp(19)] + (signal(2, f"SIG2_{kind}") if kind != 1 else [])
            if kind == 0: bar += [I("s_setprio 1")]
            f.append((BARP - 4, bar))
            f += spread(att_second, BARP - 3, 63)
        pend = d[3:]
        s += weave(qg_mfmas(st) if kind != 2 else [], f)
    assert not pend
    return s

def geglu():
    s = L(f"""
    s_sub_u32 s{sT0}, 15, s{sPI}
    s_cmp_lt_u32 s{sW}, 2
    s_cselect_b32 s{sST}, s{sT0}, s{sPI}
    s_mul_i32 s{sST}, s{sST}, {AF_MT}
    s_add_u32 s{sST}, s{sST}, {AF_OFF:#x}
    s_lshl_b32 s{sT1}, s{sFB}, 14
    s_add_u32 s{sST}, s{sST}, s{sT1}
    s_and_b32 s{sT0}, s{sW}, 1
    s_lshl_b32 s{sT0}, s{sT0}, 10
    s_add_u32 s{sST}, s{sST}, s{sT0}
    s_mov_b32 s{sT0}, {f2h(-C1 * 0.044715)}
    v_mov_b32 v{vT}, {f2h(-C1)}
    """)
    for tt in range(8):
        tb = 32 + (tt % 2) * 16
        regs = [(acc2(tt * 4 + j) + r, acc2(tt * 4 + 2 + j) + r) for j in range(2) for r in range(4)]
        T = [tb + k for k in range(8)]
        for k, (a, u) in enumerate(regs): s.append(I(f"v_mul_f32 v{T[k]}, v{a}, v{a}"))
        for k, (a, u) in enumerate(regs): s.append(I(f"v_fma_f32 v{T[k]}, v{T[k]}, s{sT0}, v{vT}"))
        for k, (a, u) in enumerate(regs): s.append(I(f"v_mul_f32 v{T[k]}, v{T[k]}, v{a}"))
        for k, (a, u) in enumerate(regs): s.append(I(f"v_exp_f32 v{T[k]}, v{T[k]}"))
        for k, (a, u) in enumerate(regs): s.append(I(f"v_add_f32 v{T[k]}, 1.0, v{T[k]}"))
        for k, (a, u) in enumerate(regs): s.append(I(f"v_rcp_f32 v{T[k]}, v{T[k]}"))
        for k, (a, u) in enumerate(regs): s.append(I(f"v_mul_f32 v{a}, v{a}, v{u}"))
        for k, (a, u) in enumerate(regs): s.append(I(f"v_mul_f32 v{T[k]}, v{T[k]}, v{a}"))
        o = tb + 8
        s += pack2(o, T[0], T[4])
        s.append(I(f"buffer_store_dwordx4 v[{o}:{o+3}], v{vD}, s[{SWS}:{SWS+3}], s{sST} offen offset:{(tt%2)*2048} sc1"))
        if tt % 2 == 1 and tt < 7: s.append(I(f"s_add_u32 s{sST}, s{sST}, 4096"))
    s.append(I("s_setprio 0"))
    return s

QB_LDS = 32768
def qepi():
    s = L(f"""
    s_bitcmp1_b32 s{sW}, 1
    s_cselect_b32 s{sT0}, {QB_LDS//1024}, {QS//1024 - 128}
    s_cselect_b32 s{sT1}, 0, 128
    s_add_u32 s{sT0}, s{sT0}, s{sT1}
    s_and_b32 s{sT1}, s{sW}, 1
    s_lshl_b32 s{sT1}, s{sT1}, 1
    s_add_u32 s{sT0}, s{sT0}, s{sT1}
    s_lshl_b32 s{sT0}, s{sT0}, 10
    v_add_u32 v{vTMP}, s{sT0}, v{vD}
    s_mov_b32 s{sT0}, {f2h(QSC)}
    """)
    k = 0
    for tt in range(8):
        for jj in range(2):
            x, y = acc2(tt * 4 + 2 * jj), acc2(tt * 4 + 2 * jj + 1)
            s += [I(f"v_mul_f32 v{x+r}, s{sT0}, v{x+r}") for r in range(4)] + [I(f"v_mul_f32 v{y+r}, s{sT0}, v{y+r}") for r in range(4)]
            tmp = 32 + 4 * (k % 8); k += 1
            s += pack2(tmp, x, y)
            s.append(I(f"ds_write_b128 v{vTMP}, v[{tmp}:{tmp+3}] offset:{tt*4096 + jj*1024}"))
    return s
```

```python
from fz1 import *

sKoff, sVoff, mK, mV = 44, 45, 46, 47
sC1, sC2, sMO, sKX, sKXL, sTHR = 48, 49, 50, 51, 52, 53
sRET = 54
sSIG, sSTA, sSTB, sKJ = 56, 57, 58, 59
sE = 31
HOOK = {}
sEXW, sEXR, sMLW, sMLR = 32, 33, 34, 35
sMASK = 60
vK, vV, vGB1, vQ = 5, 6, 7, 8
vTS = [9, 10]; vL = [11, 12]
vGA, vGB0, vNEG = 13, 14, 15
vA = [16, 17, 18, 19, 20, 21, 22, 23]
E = 24
NM = [32, 36]
P1R = 40; P0R = [56, 48]
FR = 64
S = [128, 96]
Q = 160
O = 192
Sreg = lambda buf, a, qb: S[buf] + (a * 2 + qb) * 4
Qreg = lambda qb, u: Q + (qb * 4 + u) * 4
Oreg = lambda b, qb: O + (b * 2 + qb) * 4
SLOTB, HALFB = 0x10000, 0x4000
ML_LDS = 151552

def k_dma(tag=None):
    g = dma4(f"s_mov_b32 m0, s{mK}", [vD] * 4, SWS, sKoff, tag, 32768, " sc1")
    g[-1].append(I(f"s_xor_b32 s{mK}, s{mK}, {SLOTB:#x}"))
    return g
def v_dma(tag=None):
    g = dma4(f"s_mov_b32 m0, s{mV}", [vD] * 4, SWS, sVoff, tag, 32768, " sc1")
    g[-1].append(I(f"s_xor_b32 s{mV}, s{mV}, {SLOTB:#x}"))
    return g

def att_scalars():
    return L(f"""
    s_lshl_b32 s{sKoff}, s{sH}, 19
    s_add_u32 s{sKoff}, s{sKoff}, s{mA}
    s_add_u32 s{sKoff}, s{sKoff}, {KF_OFF:#x}
    s_add_u32 s{sVoff}, s{sKoff}, {VF_OFF:#x}
    s_mov_b32 s{mK}, s{mA}
    s_add_u32 s{mV}, s{mA}, {32768 + SLOTB}
    """)

def mask_cmps(typ, t):
    s = L(f"""
    s_and_b32 s{sT3}, s{sW}, 3
    s_lshl_b32 s{sT3}, s{sT3}, 5
    """)
    if typ: s += L(f"s_sub_i32 s{sT3}, s{sT3}, 64")
    s += L(f"""
    v_lshlrev_b32 v{t}, 2, v{vG}
    v_sub_u32 v{t}, v{vI16}, v{t}
    v_add_u32 v{t}, s{sT3}, v{t}
    """)
    for d in range(5):
        for rr in range(4):
            m = sMASK + 2 * (d * 4 + rr)
            s.append(I(f"v_cmp_gt_i32 s[{m}:{m+1}], {16*(d-1)+rr}, v{t}"))
    return s

def att_setup(grp):
    s = L(f"""
    v_mov_b32 v{vK}, v{vD}
    v_add_u32 v{vV}, {32768 + SLOTB}, v{vD}
    s_and_b32 s{sT0}, s{sW}, 3
    s_lshl_b32 s{sT1}, s{sT0}, 13
    s_add_u32 s{sT1}, s{sT1}, {QB_LDS if grp else QS}
    v_add_u32 v{vQ}, s{sT1}, v{vD}
    s_add_u32 s{sC1}, s{sPI}, {1 - grp}
    s_sub_u32 s{sC2}, 7, s{sPI}
    s_mov_b32 s{sKXL}, {HALFB if grp else SLOTB:#x}
    s_mov_b32 s{sTHR}, {f2h(256.0)}
    s_lshl_b32 s{sT1}, s{sH}, 15
    s_add_u32 s{sT1}, s{sT1}, {AF_OFF + 27*16384:#x}
    s_lshl_b32 s{sT2}, s{sT0}, 12
    s_add_u32 s{sT1}, s{sT1}, s{sT2}
    s_mul_i32 s{sT2}, s{sPI}, {AF_MT}
    s_add_u32 s{sSTB}, s{sT1}, s{sT2}
    s_sub_u32 s{sT2}, 15, s{sPI}
    s_mul_i32 s{sT2}, s{sT2}, {AF_MT}
    s_add_u32 s{sSTA}, s{sT1}, s{sT2}
    """)
    g = [[i] for i in s]
    if grp:
        g += [L(f"s_add_u32 s{sSTA}, s{sSTA}, 2048"), L(f"s_mov_b32 s{sMO}, 1"), L(f"s_mov_b32 s{sKJ}, 0")]
    else:
        g += [L(f"s_cmp_eq_u32 s{sPI}, 7\ns_cselect_b32 s{sMO}, 1, 0"), L(f"s_mov_b32 s{sKJ}, s{sMO}")]
    g += [L(f"s_mov_b32 s{sSIG}, 0"), L(f"s_mov_b32 s{sE}, 3")]
    if "itst" in OPT: g += [L("s_mov_b32 s41, 21")]
    g += [[i] for i in mask_cmps(0, vTMP)]
    return g

def g_loads():
    t = vA[7]
    return L(f"""
    s_and_b32 s{sT0}, s{sW}, 3
    s_lshl_b32 s{sT0}, s{sT0}, 7
    s_add_u32 s{sT0}, s{sT0}, {G_OFF:#x}
    s_sub_u32 s{sT1}, 15, s{sPI}
    s_lshl_b32 s{sT1}, s{sT1}, 9
    s_add_u32 s{sT1}, s{sT1}, s{sT0}
    s_lshl_b32 s{sT2}, s{sP}, 6
    s_add_u32 s{sT1}, s{sT1}, s{sT2}
    v_lshlrev_b32 v{t}, 2, v{vI16}
    buffer_load_dword v{vGA}, v{t}, s[{SWS}:{SWS+3}], s{sT1} offen sc1
    s_lshl_b32 s{sT1}, s{sPI}, 9
    s_add_u32 s{sT1}, s{sT1}, s{sT0}
    buffer_load_dword v{vGB0}, v{t}, s[{SWS}:{SWS+3}], s{sT1} offen sc1
    buffer_load_dword v{vGB1}, v{t}, s[{SWS}:{SWS+3}], s{sT1} offen offset:64 sc1
    """)

def pf_w(wo):
    a, n = vA[4], 10 if wo else 9
    R = SWO if wo else SWD
    s = L(f"""
    s_lshl_b32 s{sT0}, s2, 3
    s_add_u32 s{sT0}, s{sT0}, s{sW}
    """)
    if wo: s += L(f"""
    s_and_b32 s{sT1}, s{sE}, 1
    s_lshl_b32 s{sT1}, s{sT1}, 11
    s_add_u32 s{sT0}, s{sT0}, s{sT1}
    """)
    return s + L(f"""
    s_mul_i32 s{sT0}, s{sT0}, {n*128}
    v_lshlrev_b32 v{a}, 3, v{vD}
    v_subrev_u32 v{a}, {50*128}, v{a}
    s_mov_b32 exec_lo, 0
    s_mov_b32 exec_hi, {((1 << n) - 1) << 18:#x}
    buffer_load_dword v0, v{a}, s[{R}:{R+3}], s{sT0} offen
    s_mov_b64 exec, -1
    """)

def first_stub(name):
    lab = f"{name}_F"
    pw = (lambda wo: []) if "nopf3" in OPT else pf_w
    later = pw(1) + L(f"s_sub_u32 s{sE}, s{sE}, 1\ns_branch {lab}B")
    if name == "I0": return L(f"{lab}:") + later, pw(1)
    body = signal(3, f"{lab}_SG", vA[0]) + flag_chk("B", vA[6], 2) + L(f"s_cbranch_vccz {lab}_C") + spin("B", vA[6], 2, lab) + L(f"{lab}_C:")
    lin = signal(3, f"{lab}_SG", vA[0]) + flag_chk("B", vA[6], 2) + g_loads() + pw(0)
    return (L(f"{lab}:\ns_cmp_eq_u32 s{sE}, 3\ns_cbranch_scc1 {lab}1") + later + L(f"{lab}1:") + [stamp(7)] + body + [stamp(6)] + g_loads() + pw(0)
            + L(f"s_mov_b32 s{sE}, 2\ns_branch {lab}B")), lin

def q_reads():
    return [rd128(Qreg(qb, u), vQ, (qb * 4 + u) * 1024) for qb in range(2) for u in range(4)]

def kread(n): return rd128(FR + 4 * (n % 8), vK, n * 1024)
def vread(f): return rd128(FR + 4 * (f % 8), vV, f * 1024)

def qk_mfmas(buf, zero_c):
    out = []
    for n in range(16):
        a, u = n >> 2, n & 3
        for qb in range(2):
            c = None if u else (0 if zero_c else NM[qb])
            out.append(mf(Sreg(buf, a, qb), FR + 4 * (n % 8), Qreg(qb, u), c))
    return out

def pv_mfmas(par):
    out = []
    for f in range(16):
        u, b = f >> 3, f & 7
        for qb in range(2):
            pr = (P0R[par] if u == 0 else P1R) + 4 * qb
            out.append(mf(Oreg(b, qb), FR + 4 * (f % 8), pr))
    return out

def softmax_half(buf, hf, pbase):
    pairs = [(a, qb, r) for a in (2 * hf, 2 * hf + 1) for r in (0, 2) for qb in range(2)]
    ops = []
    started = [hf == 1, hf == 1]
    def tail(p):
        a, qb, r = pairs[p]
        e = E + 2 * (p % 4)
        o = []
        if started[qb]:
            o += [I(f"v_add_f32 v{vTS[qb]}, v{vTS[qb]}, v{e}"), I(f"v_add_f32 v{vTS[qb]}, v{vTS[qb]}, v{e+1}")]
        else:
            o += [I(f"v_add_f32 v{vTS[qb]}, v{e}, v{e+1}")]; started[qb] = True
        o.append(cvtpk(pbase + 4 * qb + 2 * (a & 1) + r // 2, e, e + 1))
        return o
    for p, (a, qb, r) in enumerate(pairs):
        e = E + 2 * (p % 4)
        sr = Sreg(buf, a, qb) + r
        ops += [I(f"v_exp_f32 v{e}, v{sr}"), I(f"v_exp_f32 v{e+1}, v{sr+1}")]
        if p >= 1: ops += tail(p - 1)
    ops += [I("s_nop 0")] + tail(len(pairs) - 1)
    return ops

def xlane(op, x, t):
    return [L(f"v_mov_b32 v{t}, v{x}\ns_nop 1\nv_permlane32_swap_b32 v{t}, v{x}\ns_nop 1\n{op} v{x}, v{x}, v{t}"),
            L(f"v_mov_b32 v{t}, v{x}\ns_nop 1\nv_permlane16_swap_b32 v{t}, v{x}\ns_nop 1\n{op} v{x}, v{x}, v{t}")]
flat = lambda g: sum(([x] if isinstance(x, I) else x for x in g), [])

def rowmax(buf, qb, dst):
    regs = [Sreg(buf, a, qb) + r for a in range(4) for r in range(4)]
    s = [I(f"v_max3_f32 v{dst}, v{regs[0]}, v{regs[1]}, v{regs[2]}")]
    for k in range(3, 15, 2):
        s.append(I(f"v_max3_f32 v{dst}, v{dst}, v{regs[k]}, v{regs[k+1]}"))
    s.append(I(f"v_max_f32 v{dst}, v{dst}, v{regs[15]}"))
    return s

def fresh_max(buf):
    B = []
    r0, r1 = rowmax(buf, 0, vA[0]), rowmax(buf, 1, vA[1])
    for a, b in zip(r0, r1): B += [a, b]
    for qb in range(2):
        B += xlane("v_max_f32", vA[qb], vA[2 + qb])
        B += L(f"v_max_f32 v{vA[qb]}, {f2h(-1.0e30)}, v{vA[qb]}")
    for qb in range(2):
        B += [I(f"v_sub_f32 v{Sreg(buf, a, qb)+r}, v{Sreg(buf, a, qb)+r}, v{vA[qb]}") for a in range(2) for r in range(4)]
    for qb in range(2):
        B += [I(f"v_sub_f32 v{Sreg(buf, a, qb)+r}, v{Sreg(buf, a, qb)+r}, v{vA[qb]}") for a in range(2, 4) for r in range(4)]
        B += [I(f"v_sub_f32 v{NM[qb]+r}, 0, v{vA[qb]}") for r in range(4)]
    return B

def mask_block(buf):
    s = []
    for a in range(4):
        for qb in range(2):
            for rr in range(4):
                m = sMASK + 2 * ((a - qb + 1) * 4 + rr)
                r = Sreg(buf, a, qb) + rr
                s.append(I(f"v_cndmask_b32 v{r}, v{r}, v{vNEG}, s[{m}:{m+1}]"))
    return s

def check_ops():
    return L(f"""
    v_max_f32 v{vA[0]}, v{vTS[0]}, v{vTS[1]}
    v_cmp_lt_f32 vcc, s{sTHR}, v{vA[0]}
    """)

def rare(par, with_next, name):
    cur, nxt = par, par ^ 1
    s = L(f"{name}:\ns_nop 7")
    for qb in range(2):
        d = vA[qb]
        s += rowmax(cur, qb, d) + flat(xlane("v_max_f32", d, vA[2]))
        s += L(f"v_max_f32 v{d}, 0, v{d}")
    for qb in range(2):
        d = vA[qb]; f = vA[4 + qb]
        s += L(f"v_exp_f32 v{f}, -v{d}")
        for buf in ((cur, nxt) if with_next else (cur,)):
            for a in range(4):
                for r in range(4):
                    x = Sreg(buf, a, qb) + r
                    s.append(I(f"v_sub_f32 v{x}, v{x}, v{d}"))
        for r in range(4):
            s.append(I(f"v_sub_f32 v{NM[qb]+r}, v{NM[qb]+r}, v{d}"))
        for b in range(8):
            for r in range(4):
                x = Oreg(b, qb) + r
                s.append(I(f"v_mul_f32 v{x}, v{x}, v{f}"))
        s.append(I(f"v_mul_f32 v{vL[qb]}, v{vL[qb]}, v{f}"))
    s += softmax_half(cur, 0, P0R[par]) + softmax_half(cur, 1, P1R)
    s += L(f"s_nop 1\ns_setpc_b64 s[{sRET}:{sRET+1}]")
    return s

def ladd():
    return [I(f"v_add_f32 v{vL[qb]}, v{vL[qb]}, v{vTS[qb]}") for qb in range(2)]

def bar_stamp():
    return L("""
    s_memrealtime s[100:101]
    s_waitcnt lgkmcnt(0)
    s_mov_b32 m0, s41
    v_writelane_b32 v0, s100, m0
    s_add_u32 s41, s41, 2
    """)
NPRE = 6
def it(name):
    par = {"E1": 0, "O1": 1, "E1s": 0, "O1s": 1, "I0": 0, "I1": 1}[name]
    nx = par ^ 1
    qk = qk_mfmas(nx, name == "O1s")
    pv = pv_mfmas(par)
    fa = [(2 * n - 12, kread(n)) for n in range(NPRE, 16)] + [(2 * (16 + f) - 12, vread(f)) for f in range(0, 6)]
    d = {"E1": v_dma(), "E1s": v_dma(), "O1": k_dma(), "O1s": k_dma()}.get(name) or (k_dma() + v_dma())
    sm = softmax_half(par, 1, P1R)
    cond = {"O1": f"s_cmp_eq_u32 s{sC1}, s{sMO}", "O1s": f"s_cmp_eq_u32 s{sPI}, 7", "I1": f"s_cmp_eq_u32 s{sC2}, 1"}.get(name)
    if cond:
        junk = {"O1": f"s_cmp_eq_u32 s{sC1}, s{sKJ}"}.get(name, cond)
        d = [guarded(0, g) for g in d[:4]] + d[4:]
        fa += [(0, L(junk + "\ns_cselect_b64 vcc, -1, 0"))]
    fa += spread(d, 1, 17) + spread(sm, 0, 29) + [(29, check_ops())]
    if name == "E1s": fa += spread(mask_cmps(1, vA[3]), 2, 26)
    if cond: fa += [(30, L(cond))]
    A = weave(qk, fa)
    rname = "RARE1B" if name == "O1s" else f"RARE{par}"
    mid = L(f"s_cbranch_vccnz {name}_R\n{name}_RB:")
    stubs = L(f"{name}_R:\ns_call_b64 s[{sRET}:{sRET+1}], {rname}") + (L(cond) if cond else []) + L(f"s_branch {name}_RB")
    mstub = []
    if cond:
        mid += L(f"s_cbranch_scc1 {name}_M\n{name}_MB:")
        arm = L(f"s_cmp_eq_u32 s{sP}, 1\ns_cbranch_scc1 {name}_MB") if name == "O1" else []
        arm += L(f"s_mov_b32 s{sSIG}, 1") + HOOK["last_loads"]()
        mstub = L(f"{name}_M:\ns_nop 7") + mask_block(nx) + arm + L(f"s_branch {name}_MB")
    if name == "E1s":
        mid += [I("s_nop 5")] + mask_block(nx)
    kx = {"E1": f"{SLOTB|HALFB:#x}", "O1": f"s{sKX}"}.get(name, f"{SLOTB:#x}")
    vx = {"E1": HALFB, "E1s": HALFB, "O1": SLOTB | HALFB}.get(name, SLOTB)
    fb = [(2 * f - 12, vread(f)) for f in range(6, 16)]
    vm = 4 if name in ("E1", "E1s") else 0
    bar = L(f"""
    s_waitcnt vmcnt({vm}) lgkmcnt(0)
    s_barrier
    v_xor_b32 v{vK}, {kx}, v{vK}
    v_xor_b32 v{vV}, {vx:#x}, v{vV}
    """) + [kread(0), kread(1)]
    sig = []; siglin = []
    if name in ("E1", "E1s", "I0"):
        bar += L(f"s_cmp_lg_u32 s{sE}, 0\ns_cbranch_scc1 {name}_F\n{name}_FB:")
        sig, siglin = first_stub(name)
        siglin = {0: siglin, 1: siglin}
    if cond:
        bar += L(f"s_cmp_lg_u32 s{sSIG}, 0\ns_cbranch_scc1 {name}_F\n{name}_FB:")
        sig, siglin = HOOK["last_stub"](name)
    if "itst" in OPT and name in ("O1", "O1s", "I1"):
        bar = bar[:2] + bar_stamp() + bar[2:]
    fb += [(22, bar)] + [(24 + 2 * j, kread(2 + j)) for j in range(NPRE - 2)]
    if name == "O1s":
        pre = [I(f"v_add_f32 v{vA[6+qb]}, v{vL[qb]}, v{vTS[qb]}") for qb in range(2)] + [I(f"v_mov_b32 v{vL[qb]}, 0") for qb in range(2)]
        fb += spread(pre, 0, 2) + spread(fresh_max(nx), 2, 16) + spread(softmax_half(nx, 0, P0R[nx]), 16, 31)
    else:
        fb += spread(ladd() + softmax_half(nx, 0, P0R[nx]), 0, 30)
    if name == "E1s":
        fb += [(0, L(f"v_add_u32 v{vQ}, {QS - QB_LDS}, v{vQ}"))] + [(1 + 2 * k, r) for k, r in enumerate(q_reads())]
    if name == "O1":
        fb += [(10, L(f"s_cmp_eq_u32 s{sC1}, 1\ns_cselect_b32 s{sKX}, s{sKXL}, {HALFB:#x}")), (29, L(f"s_sub_u32 s{sC1}, s{sC1}, 1\ns_cmp_eq_u32 s{sC1}, 0"))]
    if name == "I1":
        fb += [(29, L(f"s_sub_u32 s{sC2}, s{sC2}, 1\ns_cmp_eq_u32 s{sC2}, 0"))]
    B = weave(pv, fb)
    return dict(A=A, mid=mid, B=B, rstub=stubs, mstub=mstub, sig=sig, siglin=siglin, rname=rname)

def pro():
    qk = qk_mfmas(0, True)
    rd = [(max(-1, 2 * n - 12), kread(n)) for n in range(16)]
    z = [I(f"v_mov_b32 v{O+k}, 0") for k in range(64)] + [I(f"v_mov_b32 v{vL[qb]}, 0") for qb in range(2)] + L(f"v_mov_b32 v{vNEG}, {f2h(-3.0e38)}")
    A = q_reads() + weave(qk, rd + spread(z, 0, 32) + [(20, L(f"v_xor_b32 v{vK}, {HALFB:#x}, v{vK}"))]
                                         + [(20 + 2 * n, kread(n)) for n in range(NPRE)] + [(30, L(f"s_cmp_eq_u32 s{sC1}, 0"))])
    mid = L("s_nop 1\ns_cbranch_scc1 PRO_M\nPRO_MB:")
    B = flat(fresh_max(0)) + softmax_half(0, 0, P0R[0]) + poll_load("B", vA[6], "p2")
    B += [stamp(8), I("s_barrier"), stamp(22)] + L(f"s_cmp_eq_u32 s{sC1}, 0")
    mstub = L("PRO_M:\ns_nop 4") + mask_block(0) + L("s_branch PRO_MB")
    M = I("; @@PM")
    lin = resolve_vm(A + [M] + B)
    k = lin.index(M)
    return dict(A=lin[:k], mid=mid, B=lin[k+1:], mstub=mstub)

def bepi():
    s = flat(xlane("v_add_f32", vA[6], vA[0]) + xlane("v_add_f32", vA[7], vA[1]))
    s += L(f"""
    v_rcp_f32 v{vA[6]}, v{vA[6]}
    v_rcp_f32 v{vA[7]}, v{vA[7]}
    s_nop 0
    v_mul_f32 v{vA[6]}, v{vA[6]}, v{vGB0}
    v_mul_f32 v{vA[7]}, v{vA[7]}, v{vGB1}
    """)
    k = 0
    for u in range(4):
        for qb in range(2):
            x, y = Oreg(2 * u, qb), Oreg(2 * u + 1, qb)
            s += [I(f"v_mul_f32 v{x+r}, v{x+r}, v{vA[6+qb]}") for r in range(4)] + [I(f"v_mul_f32 v{y+r}, v{y+r}, v{vA[6+qb]}") for r in range(4)]
            tmp = [40, 44, 48, 52, 88, 92, 120, 124][k % 8]; k += 1
            s += pack2(tmp, x, y)
            s.append(I(f"buffer_store_dwordx4 v[{tmp}:{tmp+3}], v{vD}, s[{SWS}:{SWS+3}], s{sSTB} offen offset:{qb*2048 + (u&1)*1024} sc1"))
            s += [I(f"v_mov_b32 v{x+r}, 0") for r in range(4)] + [I(f"v_mov_b32 v{y+r}, 0") for r in range(4)]
        if u == 1: s.append(I(f"s_add_u32 s{sSTB}, s{sSTB}, 16384"))
    s += [stamp(23)]
    return s

def fin(p, d1, p3_pre, p3_head):
    A = [stamp(24)] + [vread(f) for f in range(6)]
    A += weave(softmax_half(0, 1, P1R), spread(d1, 2, 40)) + check_ops()
    A += L(f"""
    s_and_b32 s{sT0}, s{sW}, 3
    s_lshl_b32 s{sEXW}, s{sT0}, 13
    s_add_u32 s{sEXW}, s{sEXW}, {32768 + p*65536}
    s_xor_b32 s{sEXR}, s{sEXW}, {SLOTB:#x}
    s_lshl_b32 s{sMLW}, s{sW}, 9
    s_add_u32 s{sMLW}, s{sMLW}, {ML_LDS}
    s_lshl_b32 s{sMLR}, s{sT0}, 9
    s_add_u32 s{sMLR}, s{sMLR}, {ML_LDS + (1-p)*2048}
    """)
    mid = L(f"s_cbranch_vccnz FIN{p}_R\nFIN{p}_RB:")
    rstub = L(f"FIN{p}_R:\ns_call_b64 s[{sRET}:{sRET+1}], RARE0B\ns_branch FIN{p}_RB")
    post = ladd() + xlane("v_add_f32", vL[0], vA[0]) + xlane("v_add_f32", vL[1], vA[1])
    aW, aR, mW_, mR_ = vA[4], vA[5], vA[6], vA[7]
    post += L(f"""
    v_add_u32 v{aW}, s{sEXW}, v{vD}
    v_add_u32 v{aR}, s{sEXR}, v{vD}
    v_lshrrev_b32 v{mR_}, 1, v{vD}
    v_add_u32 v{mW_}, s{sMLW}, v{mR_}
    v_add_u32 v{mR_}, s{sMLR}, v{mR_}
    v_mov_b32 v{E}, v{NM[1-p]}
    v_mov_b32 v{E+1}, v{vL[1-p]}
    ds_write_b64 v{mW_}, v[{E}:{E+1}]
    """)
    B = [stamp(60)] + weave(pv_mfmas(0), [(2 * f - 12, vread(f)) for f in range(6, 16)] + spread(post, 0, 20) + spread(p3_pre, 20, 30))
    B += [stamp(61)] + L("s_waitcnt lgkmcnt(0)\ns_barrier") + [stamp(62)] + L(f"""
    ds_read_b64 v[{E+4}:{E+5}], v{mR_}
    s_nop 4
    """)
    X = S[0]
    F2 = vA[0]
    B += [I(f"ds_write_b128 v{aW}, v[{Oreg(b, 1-p)}:{Oreg(b, 1-p)+3}] offset:{b*1024}") for b in range(8)]
    B += L(f"""
    v_min_f32 v{E}, v{NM[p]}, v{E+4}
    v_sub_f32 v{E+1}, v{E}, v{NM[p]}
    v_sub_f32 v{E}, v{E}, v{E+4}
    v_exp_f32 v{E+1}, v{E+1}
    v_exp_f32 v{E}, v{E}
    s_nop 0
    v_mul_f32 v{E+3}, v{vL[p]}, v{E+1}
    v_fma_f32 v{E+3}, v{E+5}, v{E}, v{E+3}
    v_rcp_f32 v{E+3}, v{E+3}
    s_nop 0
    v_mul_f32 v{E+3}, v{E+3}, v{vGA}
    v_mul_f32 v{E+1}, v{E+1}, v{E+3}
    v_mul_f32 v{F2}, v{E}, v{E+3}
    """)
    mul = [I(f"v_mul_f32 v{Oreg(b,p)+r}, v{Oreg(b,p)+r}, v{E+1}") for b in range(8) for r in range(4)]
    B += mul[:8] + [stamp(63)] + L("s_waitcnt lgkmcnt(0)\ns_barrier") + [stamp(64)]
    B += [rd128(X + 4 * b, aR, b * 1024) for b in range(8)] + mul[8:]
    B += [waitvm("d1", lgkm=True), I("s_barrier"), stamp(25)]
    T = []
    for u in range(4):
        for b in (2 * u, 2 * u + 1):
            o = Oreg(b, p)
            T += [I(f"v_fma_f32 v{o+r}, v{X+4*b+r}, v{F2}, v{o+r}") for r in range(4)]
        tmp = Oreg(4 + u, 1 - p)
        T += pack2(tmp, Oreg(2 * u, p), Oreg(2 * u + 1, p))
        if u == 2: T.append(I(f"s_add_u32 s{sSTA}, s{sSTA}, 16384"))
        T.append(I(f"buffer_store_dwordx4 v[{tmp}:{tmp+3}], v{vD}, s[{SWS}:{SWS+3}], s{sSTA} offen offset:{(u&1)*1024} sc1 ; @ctx"))
    B += weave(T, spread(p3_head, 0, 44)) + [stamp(26)]
    return dict(A=A, mid=mid, B=B, rstub=rstub, rname="RARE0B")
```
